```python
import torch

def _softmax(x, axis=-1):
    return torch.softmax(x, dim=axis)

def _gelu(x):
    return torch.nn.functional.gelu(x, approximate='tanh')

def _silu(x):
    return torch.nn.functional.silu(x)

def _sigmoid(x):
    return torch.sigmoid(x)

def _layernorm(x, axis=-1, eps=1e-05):
    m = x.mean(dim=axis, keepdim=True)
    v = x.var(dim=axis, keepdim=True, unbiased=False)
    return (x - m) / torch.sqrt(v + eps)

def _scatter_add(tgt, idx, src, axis=0):
    return tgt.clone().index_add_(axis, idx, src)

def _segment_sum(src, seg, n):
    out = torch.zeros((n,) + src.shape[1:], dtype=src.dtype)
    return out.index_add_(0, seg, src)

def _pad(x, pw):
    flat = tuple((v for pair in reversed(pw) for v in pair))
    return torch.nn.functional.pad(x, flat)
kernel_name = 'adaLN_cond__sliding_local_dilated__dense_activation_silu__prompt'

def setup_inputs():

    _w = lambda a: (lambda t: t.to(torch.bfloat16) if t.is_floating_point() else t)(torch.as_tensor(a))

    def _A_setup():
        B, S, D = (1, 2048, 448)
        return {'x': _w((lambda *s: torch.randn(*s, dtype=torch.bfloat16) * 0.05)(B, S, D)), 'wqkv': _w((lambda *s: torch.randn(*s, dtype=torch.bfloat16) * 0.05)(D, 3 * D)), 'wo': _w((lambda *s: torch.randn(*s, dtype=torch.bfloat16) * 0.05)(D, D))}
    _A_in = _A_setup()

    def _B_setup():
        B, S, D, F = (1, 2048, 448, 1792)
        return {'x': _w((lambda *s: torch.randn(*s, dtype=torch.bfloat16) * 0.05)(B, S, D)), 'w1': _w((lambda *s: torch.randn(*s, dtype=torch.bfloat16) * 3.2)(D, F) * D ** (-0.5)), 'w2': _w((lambda *s: torch.randn(*s, dtype=torch.bfloat16) * 0.4)(F, D) * F ** (-0.5))}
    _B_in = _B_setup()
    return {'A_x': _A_in['x'], 'A_wqkv': _A_in['wqkv'], 'A_wo': _A_in['wo'], 'B_x': _B_in['x'], 'B_w1': _B_in['w1'], 'B_w2': _B_in['w2'], 'c': _w((lambda *s: torch.randn(*s, dtype=torch.bfloat16) * 0.1)(1, 448) * 8.0), 'w_mod': _w((lambda *s: torch.randn(*s, dtype=torch.bfloat16) * 0.1)(448, 6 * 448) * 448 ** (-0.5) * 8.0)}

def reference(A_x, A_wqkv, A_wo, B_x, B_w1, B_w2, c, w_mod):

    def _A_ref(x, wqkv, wo):
        B, S, D = x.shape
        H = 16
        Dh = D // H
        W, dil = (8, 2)
        qkv = (lambda x, *d: x.permute(*d))((x @ wqkv).reshape(B, S, 3, H, Dh), 2, 0, 3, 1, 4)
        q, k, v = (qkv[0], qkv[1], qkv[2])
        scale = Dh ** (-0.5)
        pos = torch.arange(S)
        off = torch.arange(W) * dil
        idx = pos[:, None] - off[None, :]
        mask = idx >= 0
        idx_c = torch.where(mask, idx, 0).reshape(-1)
        kg = k[:, :, idx_c, :].reshape(B, H, S, W, Dh)
        vg = v[:, :, idx_c, :].reshape(B, H, S, W, Dh)
        logits = torch.einsum('bhsd,bhswd->bhsw', q, kg) * scale
        logits = torch.where(mask[None, None, :, :], logits, -1000000000.0)
        attn = _softmax(logits, axis=-1)
        o = torch.einsum('bhsw,bhswd->bhsd', attn, vg)
        return (lambda x, *d: x.permute(*d))(o, 0, 2, 1, 3).reshape(B, S, D) @ wo

    def _B_ref(x, w1, w2):
        h = torch.einsum('bsd,df->bsf', x, w1)
        h = _silu(h)
        out = torch.einsum('bsf,fd->bsd', h, w2)
        return out
    x = A_x
    mod = (_silu(c) @ w_mod).reshape(c.shape[0], 6, 1, -1)
    sa, ca, ga, sb, cb, gb = (mod[:, 0].clone(), mod[:, 1].clone(), mod[:, 2].clone(), mod[:, 3].clone(), mod[:, 4].clone(), mod[:, 5].clone())
    h = _layernorm(x, axis=-1) * (1 + ca) + sa
    x = x + ga * _A_ref(h, A_wqkv, A_wo)
    h = _layernorm(x, axis=-1) * (1 + cb) + sb
    x = x + gb * _B_ref(h, B_w1, B_w2)
    return x
```

```python
import re


class Reg:
    def __init__(self, kind, n, cnt=1):
        self.kind, self.n, self.cnt = kind, n, cnt
        self.neg = False

    def __str__(self):
        s = f"{self.kind}{self.n}" if self.cnt == 1 else f"{self.kind}[{self.n}:{self.n + self.cnt - 1}]"
        return ("-" if self.neg else "") + s

    def regs(self):
        return [(self.kind, self.n + i) for i in range(self.cnt)]

    def __getitem__(self, i):
        if isinstance(i, slice):
            a = i.start or 0
            b = i.stop if i.stop is not None else self.cnt
            assert 0 <= a < b <= self.cnt
            return Reg(self.kind, self.n + a, b - a)
        assert 0 <= i < self.cnt
        return Reg(self.kind, self.n + i, 1)

    def __neg__(self):
        r = Reg(self.kind, self.n, self.cnt)
        r.neg = True
        return r


def V(n, cnt=1):
    assert 0 <= n and n + cnt <= 256, (n, cnt)
    if cnt > 1:
        assert n % 2 == 0, ("vgpr tuple alignment", n, cnt)
    return Reg("v", n, cnt)


def S(n, cnt=1):
    assert 0 <= n and n + cnt <= 102, (n, cnt)
    if cnt == 2:
        assert n % 2 == 0
    if cnt >= 4:
        assert n % 4 == 0
    return Reg("s", n, cnt)


VCC = [("s", 106), ("s", 107)]
EXEC = [("s", 126), ("s", 127)]

TRANS = ("v_exp_f32", "v_rcp_f32", "v_rsq_f32", "v_sqrt_f32", "v_log_f32")


def _regs(o):
    if isinstance(o, Reg):
        return o.regs()
    if o == "vcc":
        return list(VCC)
    if o == "exec":
        return list(EXEC)
    return []


def fmt(o):
    if isinstance(o, float):
        return repr(o)
    if isinstance(o, int):
        return str(o) if -16 <= o <= 64 else hex(o & 0xFFFFFFFF)
    return str(o)


class Asm:
    def __init__(self):
        self.lines = []
        self.t = 0
        self.wr = {}
        self.mfma_c_read = {}
        self.store_data = {}
        self.nops = 0
        self.ninstr = 0
        self.uid = 0

    def raw(self, s):
        self.lines.append(s)

    def comment(self, s):
        self.lines.append("    ; " + s)

    def label(self, name):
        self.lines.append(f"{name}:")

    def newlabel(self, base="L"):
        self.uid += 1
        return f"{base}_{self.uid}"

    def fence(self, n=12):
        need = 0
        for r, (t, k) in self.wr.items():
            lim = {"mfma4": 8, "mfma8": 12, "valu": 5, "trans": 5, "dot": 5}.get(k, 0)
            need = max(need, lim - (self.t - t))
        if need > 0:
            self._nop(need)

    def _nop(self, n):
        while n > 0:
            k = min(n, 16)
            self.lines.append(f"    s_nop {k - 1}")
            self.t += k
            self.nops += 1
            self.ninstr += 1
            n -= k

    def _classify(self, op):
        if op.startswith("v_mfma"):
            return "mfma"
        if op.startswith("v_"):
            return "valu"
        if op.startswith("buffer_") or op.startswith("global_"):
            return "vmem"
        if op.startswith("ds_"):
            return "ds"
        if op.startswith("s_load") or op.startswith("s_mem") or op.startswith("s_buffer"):
            return "smem"
        return "salu"

    def I(self, op, *ops, mods=""):
        cls = self._classify(op)
        ops = list(ops)
        dsts, srcs = [], []
        is_dpp = "row_" in mods or "quad_perm" in mods or "wave_" in mods
        if cls == "mfma":
            dsts = _regs(ops[0])
            a, b, c = _regs(ops[1]), _regs(ops[2]), _regs(ops[3])
            srcs = a + b + c
        elif cls == "valu":
            if op.startswith("v_permlane") and "swap" in op:
                dsts = _regs(ops[0]) + _regs(ops[1])
                srcs = list(dsts)
            elif op.startswith("v_cmp"):
                dsts = _regs(ops[0])
                srcs = sum((_regs(o) for o in ops[1:]), [])
            elif op in ("v_fmac_f32", "v_dot2c_f32_bf16", "v_writelane_b32"):
                dsts = _regs(ops[0])
                srcs = sum((_regs(o) for o in ops), [])
            elif op.startswith("v_add_co") or op.startswith("v_addc_co"):
                dsts = _regs(ops[0]) + _regs(ops[1])
                srcs = sum((_regs(o) for o in ops[2:]), [])
            else:
                dsts = _regs(ops[0])
                srcs = sum((_regs(o) for o in ops[1:]), [])
                if is_dpp:
                    srcs += _regs(ops[0])
        elif cls == "vmem":
            if "_store" in op:
                srcs = sum((_regs(o) for o in ops), [])
            elif " lds" in (" " + mods):
                srcs = sum((_regs(o) for o in ops), [])
            else:
                dsts = _regs(ops[0])
                srcs = sum((_regs(o) for o in ops[1:]), [])
        elif cls == "ds":
            if "write" in op:
                srcs = sum((_regs(o) for o in ops), [])
            else:
                dsts = _regs(ops[0])
                srcs = sum((_regs(o) for o in ops[1:]), [])
        elif cls == "smem":
            dsts = _regs(ops[0])
            srcs = sum((_regs(o) for o in ops[1:]), [])
        else:
            if op.startswith("s_cmp") or op.startswith("s_cbranch") or op.startswith("s_branch") or op in (
                    "s_waitcnt", "s_barrier", "s_nop", "s_sleep", "s_endpgm", "s_setprio"):
                srcs = sum((_regs(o) for o in ops), [])
            else:
                dsts = _regs(ops[0])
                srcs = sum((_regs(o) for o in ops[1:]), [])
                if "saveexec" in op:
                    dsts += EXEC

        need = 0

        def req(r, n):
            nonlocal need
            t, k = self.wr[r]
            need = max(need, n - (self.t - t))

        VALUK = ("valu", "trans", "dot")
        for r in srcs:
            if r not in self.wr:
                continue
            t, k = self.wr[r]
            if k in ("mfma4", "mfma8"):
                n = 8 if k == "mfma4" else 12
                if cls == "mfma":
                    cset = set(_regs(ops[3]))
                    abset = set(_regs(ops[1]) + _regs(ops[2]))
                    if r in abset:
                        req(r, n)
                    elif r in cset:
                        pass
                elif cls in ("valu", "vmem", "ds"):
                    req(r, n)
            elif k in VALUK:
                if r[0] == "v":
                    if cls == "mfma":
                        req(r, 3 if k == "dot" else 2)
                    elif cls == "valu":
                        if k == "dot":
                            if not (op.startswith("v_dot2") and _regs(ops[-1]) == [r] and r not in sum((_regs(o) for o in ops[1:-1]), [])):
                                req(r, 3)
                        if op.startswith("v_readlane") or op.startswith("v_readfirstlane"):
                            req(r, 1)
                        if is_dpp or op.startswith("v_permlane"):
                            req(r, 2)
                        if k == "trans" and op not in TRANS:
                            req(r, 1)
                    elif cls in ("vmem", "ds"):
                        if k == "dot":
                            req(r, 3)
                        if k == "trans":
                            req(r, 1)
                else:
                    if cls == "vmem":
                        req(r, 5)
                    elif cls == "valu":
                        if op.startswith("v_readlane") or op.startswith("v_writelane"):
                            req(r, 4)
                        else:
                            req(r, 2)
                    elif cls == "mfma":
                        req(r, 4)
                    elif cls in ("salu", "smem"):
                        req(r, 1)
        for r in dsts:
            if r in self.wr:
                t, k = self.wr[r]
                if k in ("mfma4", "mfma8") and cls in ("valu", "vmem", "ds"):
                    req(r, 8 if k == "mfma4" else 12)
                if k == "dot" and cls == "valu" and not op.startswith("v_dot2"):
                    req(r, 3)
            if cls == "valu" and r in self.mfma_c_read:
                need = max(need, 7 - (self.t - self.mfma_c_read[r]))
            if r in self.store_data and cls in ("valu", "mfma", "vmem", "ds"):
                need = max(need, 2 - (self.t - self.store_data[r]))
        if need > 0:
            self._nop(need)

        txt = "    " + op
        if ops:
            txt += " " + ", ".join(fmt(o) for o in ops)
        if mods:
            txt += " " + mods
        self.lines.append(txt)
        self.ninstr += 1
        self.t += 1
        if op == "s_nop":
            self.t += ops[0]
        kind = cls
        if cls == "mfma":
            kind = "mfma8" if "32x32" in op else "mfma4"
            for r in _regs(ops[3]):
                self.mfma_c_read[r] = self.t
        elif cls == "valu":
            kind = "trans" if op in TRANS else ("dot" if op.startswith("v_dot") else "valu")
        for r in dsts:
            self.wr[r] = (self.t, kind)
        if cls == "vmem" and "_store" in op and ("x4" in op or "x3" in op):
            for r in _regs(ops[0] if op.startswith("buffer") else ops[1]):
                self.store_data[r] = self.t

    def wait(self, vm=None, lgkm=None):
        parts = []
        if vm is not None:
            assert 0 <= vm <= 63, vm
            parts.append(f"vmcnt({vm})")
        if lgkm is not None:
            assert 0 <= lgkm <= 15, lgkm
            parts.append(f"lgkmcnt({lgkm})")
        self.I("s_waitcnt", " ".join(parts))

    def text(self):
        return "\n".join(self.lines) + "\n"
```

```python
import sys
import struct
from asmlib import Asm, V, S

NAME = "adaLN_cond__sliding_local_dilated__dense_activation_silu__prompt"
STAMPS = "--stamps" in sys.argv

D = 448
HP = 928
WS_MODG = 0
WS_FLAGS = 16384
WS_STAMP = 32768
WS_OX = 1 << 20
WS_X1 = 3 << 20
WS_ST = 5 << 20
WS_FX = 6 << 20
WS_SIZE = 16 << 20
L_HT = 0
L_QW = 74240
L_QKV = 74240
L_Q = L_QKV
L_K = L_QKV + 8192
L_V = L_QKV + 8192 + 10240
L_MODV = 131584
L_MP = 142336
L_OT = 0
L_PR = 65536
L_RED = 0
LDS_SIZE = 147456

sX, sWQKV, sWO, sW1, sW2, sC, sWMOD, sOUT, sWS, sDBG = [S(28 + 4 * i, 4) for i in range(10)]
s_cl, s_mem, s_wave, s_nonce = S(68), S(69), S(70), S(71)
st = [S(72 + i) for i in range(8)]
s_row = [S(80 + i) for i in range(8)]
s_lo, s_hi = S(88), S(89)
s_m56 = S(90, 2)
s_mA = S(92, 2)
s_mB = S(94, 2)
s_mC = S(96, 2)
s_mD = S(98, 2)
s_R0 = S(100)
s_spin = S(101)
s_stat = [S(4 + i) for i in range(22)]


def f2u(x):
    return struct.unpack("<I", struct.pack("<f", x))[0]


a = Asm()
I = a.I

v_tid = V(0)
v_lane = V(1)
v_c = V(2)
v_g = V(3)
v_l16 = V(4)
v_frag = V(5)
v_a0, v_a1, v_a2, v_a3 = V(6), V(7), V(8), V(9)
v_t = [V(10 + i) for i in range(10)]
PE, PO = 20, 78
Q0 = 134


class WSet:
    def __init__(self, e, o):
        self.e, self.o = e, o

    def T(self, n, j):
        return V(self.e[n], 4) if j == 0 else V(self.o[n], 4)

    def raw(self, n, i):
        return V(self.e[n] + 1 + i // 2) if i % 2 == 0 else V(self.o[n] + i // 2)


def chain(ebase, obase, n):
    return [ebase + 4 * i for i in range(n)], [obase + 4 * i for i in range(n)]


def set_rows(pitch):
    for i in range(8):
        I("s_mov_b32", s_row[i], i * pitch)


def load_block(ws, n, srd, vaddr, imm=0):
    for i in range(8):
        I("buffer_load_dword", ws.raw(n, i), vaddr, srd, s_row[i], mods="offen" + (f" offset:{imm}" if imm else ""))


def perm_block(ws, n):
    for p in range(4):
        re, ro = V(ws.e[n] + 1 + p), V(ws.o[n] + p)
        I("v_perm_b32", V(ws.e[n] + p), ro, re, s_lo)
        I("v_perm_b32", ro, ro, re, s_hi)


stamp_idx = [0]


def stamp(k=None):
    if not STAMPS:
        return
    k = stamp_idx[0]
    stamp_idx[0] += 1
    I("s_memrealtime", S(26, 2))
    a.wait(lgkm=0)
    I("v_mov_b32", v_t[8], S(26))
    I("s_lshl_b32", st[7], S(2), 3)
    I("s_add_u32", st[7], st[7], s_wave)
    I("s_lshl_b32", st[7], st[7], 7)
    I("s_add_u32", st[7], st[7], WS_STAMP + 4 * k)
    I("v_mov_b32", v_t[9], 0)
    I("buffer_store_dword", v_t[8], v_t[9], sWS, st[7], mods="offen")


def bf16r_pair(dlo, dhi, x, y, tmp):
    I("v_cvt_pk_bf16_f32", tmp, x, y)
    I("v_lshlrev_b32", dlo, 16, tmp)
    I("v_and_b32", dhi, 0xFFFF0000, tmp)


def unpack(dlo, dhi, src):
    I("v_lshlrev_b32", dlo, 16, src)
    I("v_and_b32", dhi, 0xFFFF0000, src)


def xrow_reduce(op, x, tmp):
    I("v_mov_b32", tmp, x)
    I("v_permlane32_swap_b32", x, tmp)
    I(op, x, x, tmp)
    I("v_mov_b32", tmp, x)
    I("v_permlane16_swap_b32", x, tmp)
    I(op, x, x, tmp)


def reduce4(q):
    I("v_permlane32_swap_b32", q[0], q[2])
    I("v_permlane32_swap_b32", q[1], q[3])
    I("v_add_f32", q[0], q[0], q[2])
    I("v_add_f32", q[1], q[1], q[3])
    I("v_permlane16_swap_b32", q[0], q[1])
    I("v_add_f32", q[0], q[0], q[1])
    for r in (8, 4, 2, 1):
        I("v_add_f32_dpp", q[0], q[0], q[0], mods=f"row_ror:{r} row_mask:0xf bank_mask:0xf")


def ln_scalars(s1, s2, t0, t1, t2):
    I("v_mul_f32", s1, f2u(1.0 / 448), s1)
    I("v_mul_f32", s2, f2u(1.0 / 448), s2)
    I("v_fma_f32", s2, -s1, s1, s2)
    I("v_max_f32", s2, 0, s2)
    bf16r_pair(t0, t1, s1, s2, t2)
    I("v_add_f32", t1, f2u(1e-5), t1)
    I("v_cvt_pk_bf16_f32", t2, t1, t1)
    I("v_lshlrev_b32", t1, 16, t2)
    I("v_sqrt_f32", t1, t1)
    I("v_cvt_pk_bf16_f32", t2, t1, t1)
    I("v_lshlrev_b32", t1, 16, t2)
    I("v_rcp_f32", s1, t1)
    I("v_mul_f32", s2, -t0, s1, mods="")


def poll_flags(xi, nmem):
    lp, done = a.newlabel("poll"), a.newlabel("polld")
    I("s_lshl_b32", st[0], s_cl, 7)
    I("s_add_u32", st[0], st[0], WS_FLAGS + xi * 4096)
    I("v_min_u32", v_t[0], nmem - 1, v_lane)
    I("v_lshlrev_b32", v_t[0], 2, v_t[0])
    I("s_mov_b32", s_spin, 0)
    a.label(lp)
    I("buffer_load_dword", v_t[1], v_t[0], sWS, st[0], mods="offen sc1")
    I("s_add_u32", s_spin, s_spin, 1)
    I("s_cmp_gt_u32", s_spin, 400000)
    I("s_cbranch_scc1", done)
    a.wait(vm=0)
    I("v_cmp_ne_u32", "vcc", s_nonce, v_t[1])
    I("s_cbranch_vccnz", lp)
    a.label(done)
    a.wait(vm=0)


def set_flag(xi):
    I("s_lshl_b32", st[0], s_cl, 7)
    I("s_lshl_b32", st[1], s_mem, 2)
    I("s_add_u32", st[0], st[0], st[1])
    I("s_add_u32", st[0], st[0], WS_FLAGS + xi * 4096)
    I("v_mov_b32", v_t[0], 0)
    I("v_mov_b32", v_t[1], s_nonce)
    I("s_mov_b64", "exec", 1)
    I("buffer_store_dword", v_t[1], v_t[0], sWS, st[0], mods="offen sc1")
    I("s_mov_b64", "exec", -1)


def poll_modvec(vecs, G):
    lp, done = a.newlabel("mpoll"), a.newlabel("mpolld")
    n = len(vecs)
    I("s_mov_b64", "exec", s_m56)
    I("v_lshlrev_b32", v_t[0], 5, v_lane)
    I("s_mov_b32", s_spin, 0)
    a.label(lp)
    for k, vec in enumerate(vecs):
        I("s_mov_b32", st[0], WS_MODG + vec * 1792)
        I("buffer_load_dwordx4", V(G + 8 * k, 4), v_t[0], sWS, st[0], mods="offen sc1")
        I("buffer_load_dwordx4", V(G + 8 * k + 4, 4), v_t[0], sWS, st[0], mods="offen offset:16 sc1")
    I("s_add_u32", s_spin, s_spin, 1)
    I("s_cmp_gt_u32", s_spin, 400000)
    I("s_cbranch_scc1", done)
    a.wait(vm=0)
    first = True
    for k in range(n):
        for j in range(4):
            tag = V(G + 8 * k + 2 * j + 1)
            if first:
                I("v_xor_b32", v_t[1], s_nonce, tag)
                first = False
            else:
                I("v_xor_b32", v_t[2], s_nonce, tag)
                I("v_or_b32", v_t[1], v_t[1], v_t[2])
    I("v_cmp_ne_u32", "vcc", 0, v_t[1])
    I("s_cbranch_vccnz", lp)
    a.label(done)
    a.wait(vm=0)
    T = G + 8 * n
    for k, vec in enumerate(vecs):
        for j in range(4):
            unpack(V(T + 2 * j), V(T + 2 * j + 1), V(G + 8 * k + 2 * j))
        if vec in (1, 4):
            for j in range(8):
                I("v_add_f32", V(T + j), 1.0, V(T + j))
            for j in range(4):
                bf16r_pair(V(T + 2 * j), V(T + 2 * j + 1), V(T + 2 * j), V(T + 2 * j + 1), v_t[2])
        I("v_add_u32", v_t[3], L_MODV + vec * 1792, v_t[0])
        I("ds_write_b128", v_t[3], V(T, 4))
        I("ds_write_b128", v_t[3], V(T + 4, 4), mods="offset:16")
    I("s_mov_b64", "exec", -1)


def barrier():
    a.wait(lgkm=0)
    I("s_barrier")


a.raw(f"""; Kernarg layout for this problem (88 bytes, ptrs only, base s[0:1]):
; @launch grid=(256,1,1) block=(512,1,1) lds={LDS_SIZE}
.amdgcn_target "amdgcn-amd-amdhsa--gfx950"
.text
.globl {NAME}_kernel
.p2align 8
.type {NAME}_kernel,@function
{NAME}_kernel:""")

I("s_cmp_ge_u32", S(2), 256)
I("s_cbranch_scc1", "L_end")
I("s_load_dwordx16", S(4, 16), S(0, 2), 0)
I("s_load_dwordx4", S(20, 4), S(0, 2), 64)
I("s_load_dwordx2", S(24, 2), S(0, 2), 80)
I("v_and_b32", v_lane, 63, v_tid)
I("v_lshrrev_b32", v_t[0], 6, v_tid)
I("v_and_b32", v_c, 15, v_lane)
I("v_lshrrev_b32", v_g, 4, v_lane)
I("v_lshlrev_b32", v_l16, 4, v_lane)
I("v_readfirstlane_b32", s_wave, v_t[0])
I("v_mul_u32_u24", v_frag, HP, v_c)
I("v_lshl_add_u32", v_frag, v_g, 4, v_frag)
I("s_and_b32", st[0], S(2), 7)
I("s_lshr_b32", st[1], S(2), 3)
I("s_and_b32", s_mem, st[1], 7)
I("s_lshr_b32", st[1], st[1], 3)
I("s_lshl_b32", s_cl, st[0], 2)
I("s_add_u32", s_cl, s_cl, st[1])
I("s_lshl_b32", s_R0, s_cl, 6)
I("s_mov_b32", s_lo, 0x05040100)
I("s_mov_b32", s_hi, 0x07060302)
I("s_mov_b32", s_m56[0], -1)
I("s_mov_b32", s_m56[1], 0x00FFFFFF)
a.wait(lgkm=0)
for srd, p, size in ((sX, 4, 1835008), (sWQKV, 6, 1204224), (sWO, 8, 401408), (sW1, 12, 1605632), (sW2, 14, 1605632),
                     (sC, 16, 896), (sWMOD, 18, 2408448), (sOUT, 20, 1835008), (sWS, 24, WS_SIZE), (sDBG, 22, 256)):
    I("s_mov_b32", srd[0], S(p))
    I("s_and_b32", srd[1], S(p + 1), 0xFFFF)
    I("s_mov_b32", srd[2], size)
    I("s_mov_b32", srd[3], 0x00020000)
stamp()

I("s_mul_i32", st[6], s_cl, 3)
I("s_add_u32", st[6], st[6], s_mem)
I("s_sub_u32", st[6], st[6], 5)
I("s_cmp_lt_u32", s_mem, 5)
I("s_cselect_b32", st[6], -1, st[6])
I("s_cmp_ge_u32", st[6], 84)
I("s_cselect_b32", st[6], -1, st[6])
s_prod = st[6]

MW = 214
MC = 230
I("s_cmp_eq_u32", s_prod, -1)
I("s_cbranch_scc1", "L_nomodld")
I("s_cmp_eq_u32", s_wave, 7)
I("s_cbranch_scc1", "L_nomodld")
I("v_lshrrev_b32", v_t[0], 2, v_lane)
I("s_lshl_b32", st[0], s_wave, 6)
I("v_add_u32", v_t[0], st[0], v_t[0])
I("v_lshlrev_b32", v_t[1], 1, v_t[0])
I("v_mul_u32_u24", v_t[0], 5376, v_t[0])
I("v_and_b32", v_t[2], 3, v_lane)
I("v_lshl_add_u32", v_t[0], v_t[2], 4, v_t[0])
I("s_lshl_b32", st[0], s_prod, 6)
for i in range(4):
    I("buffer_load_ushort", V(MC + i), v_t[1], sC, 0, mods=f"offen offset:{32 * i}")
for i in range(4):
    I("buffer_load_dwordx4", V(MW + 4 * i, 4), v_t[0], sWMOD, st[0], mods="offen")
    if i < 3:
        I("s_add_u32", st[0], st[0], 16 * 5376)
a.label("L_nomodld")

XR = 174
UR = 134
I("v_cmp_gt_u32", "vcc", 56, v_lane)
I("v_mov_b32", v_t[0], 0x10000000)
I("v_cndmask_b32", v_a0, v_t[0], v_l16, "vcc")
I("s_mul_i32", st[0], s_wave, 10)
I("s_add_u32", st[0], st[0], s_R0)
I("s_sub_u32", st[0], st[0], 16)
for i in range(10):
    I("s_max_i32", st[1], st[0], 0)
    I("s_mul_i32", st[1], st[1], 896)
    I("buffer_load_dwordx4", V(XR + 4 * i, 4), v_a0, sX, st[1], mods="offen")
    if i < 9:
        I("s_add_u32", st[0], st[0], 1)

WA = WSet(*chain(PE, PO, 14))
set_rows(2688)
I("s_lshr_b32", st[0], s_wave, 1)
I("s_and_b32", st[0], st[0], 1)
I("s_lshl_b32", st[1], s_mem, 1)
I("s_add_u32", st[1], st[1], st[0])
I("s_mul_i32", st[1], st[1], 56)
I("s_and_b32", st[2], s_wave, 1)
I("s_add_u32", st[2], st[2], 1)
I("s_cmp_lt_u32", s_wave, 4)
I("s_cselect_b32", st[2], st[2], 0)
I("s_mul_i32", st[2], st[2], 896)
I("s_add_u32", st[1], st[1], st[2])
I("v_mul_u32_u24", v_a1, 8 * 2688, v_g)
I("v_lshl_add_u32", v_a1, v_c, 2, v_a1)
I("v_add_u32", v_a1, st[1], v_a1)
I("s_and_b32", st[0], s_wave, 5)
I("s_cmp_eq_u32", st[0], 5)
I("s_cbranch_scc1", "L_noWA1")
NB1 = 5
for n in range(NB1):
    load_block(WA, n, sWQKV, v_a1)
    I("v_add_u32", v_a1, 32 * 2688, v_a1)
a.label("L_noWA1")

I("s_cmp_lg_u32", s_wave, 7)
I("s_cbranch_scc1", "L_nonce_done")
I("v_mov_b32", v_t[0], 0)
I("s_cmp_lg_u32", S(2), 0)
I("s_cbranch_scc1", "L_nonce_poll")
I("s_memrealtime", S(26, 2))
a.wait(lgkm=0)
I("s_or_b32", s_nonce, S(26), 1)
I("v_mov_b32", v_t[1], s_nonce)
I("s_mov_b64", "exec", 1)
I("buffer_store_dword", v_t[1], v_t[0], sDBG, 0, mods="offen sc1")
I("s_mov_b64", "exec", -1)
I("s_branch", "L_nonce_done")
a.label("L_nonce_poll")
I("s_mov_b32", s_spin, 0)
a.label("L_nonce_lp")
I("buffer_load_dword", v_t[1], v_t[0], sDBG, 0, mods="offen sc1")
I("s_add_u32", s_spin, s_spin, 1)
I("s_cmp_gt_u32", s_spin, 400000)
I("s_cbranch_scc1", "L_nonce_done")
a.wait(vm=0)
I("v_readfirstlane_b32", s_nonce, v_t[1])
I("s_cmp_eq_u32", s_nonce, 0)
I("s_cbranch_scc1", "L_nonce_lp")
a.label("L_nonce_done")

I("s_cmp_eq_u32", s_prod, -1)
I("s_cbranch_scc1", "L_nomod")
I("s_cmp_eq_u32", s_wave, 7)
I("s_cbranch_scc1", "L_mod_bar")
I("s_cmp_eq_u32", s_wave, 5)
I("s_cbranch_scc1", "L_mod_w5")
a.wait(vm=10 + 8 * NB1)
I("s_branch", "L_mod_go")
a.label("L_mod_w5")
a.wait(vm=10)
a.label("L_mod_go")
ACC = 234
for i in range(4):
    cf = V(MC + i)
    I("v_lshlrev_b32", cf, 16, cf)
    I("v_mul_f32", v_t[0], f2u(-1.4426950408889634), cf)
    I("v_exp_f32", v_t[0], v_t[0])
    I("v_add_f32", v_t[0], 1.0, v_t[0])
    I("v_rcp_f32", v_t[0], v_t[0])
    I("v_mul_f32", cf, cf, v_t[0])
    I("v_cvt_pk_bf16_f32", cf, cf, cf)
    I("v_lshlrev_b32", cf, 16, cf)
for i in range(4):
    for j in range(4):
        unpack(V(242), V(243), V(MW + 4 * i + j))
        if i == 0:
            I("v_mul_f32", V(ACC + 2 * j), V(242), V(MC + i))
            I("v_mul_f32", V(ACC + 2 * j + 1), V(243), V(MC + i))
        else:
            I("v_fmac_f32", V(ACC + 2 * j), V(242), V(MC + i))
            I("v_fmac_f32", V(ACC + 2 * j + 1), V(243), V(MC + i))
for r in (4, 8):
    for j in range(8):
        I("v_add_f32_dpp", V(ACC + j), V(ACC + j), V(ACC + j), mods=f"row_ror:{r} row_mask:0xf bank_mask:0xf")
I("s_lshl_b32", st[0], s_wave, 9)
I("s_add_u32", st[0], st[0], L_MP)
I("v_lshlrev_b32", v_t[0], 7, v_g)
I("v_lshl_add_u32", v_t[0], v_c, 5, v_t[0])
I("v_add_u32", v_t[0], st[0], v_t[0])
I("v_cmp_gt_u32", "vcc", 4, v_c)
I("s_and_saveexec_b64", S(26, 2), "vcc")
I("ds_write_b128", v_t[0], V(ACC, 4))
I("ds_write_b128", v_t[0], V(ACC + 4, 4), mods="offset:16")
I("s_mov_b64", "exec", -1)
a.label("L_mod_bar")
barrier()
I("s_cmp_lg_u32", s_wave, 7)
I("s_cbranch_scc1", "L_nomod")
I("v_mul_u32_u24", v_t[0], 7 * 128, v_g)
I("v_lshl_add_u32", v_t[0], v_c, 3, v_t[0])
I("v_add_u32", v_t[0], L_MP, v_t[0])
for k in range(7):
    I("ds_read_b64", V(MW + 2 * k, 2), v_t[0], mods=f"offset:{128 * k}")
a.wait(lgkm=0)
for k in range(1, 7):
    I("v_add_f32", V(MW), V(MW), V(MW + 2 * k))
    I("v_add_f32", V(MW + 1), V(MW + 1), V(MW + 2 * k + 1))
xrow_reduce("v_add_f32", V(MW), v_t[1])
xrow_reduce("v_add_f32", V(MW + 1), v_t[2])
I("v_cvt_pk_bf16_f32", V(MW + 2), V(MW), V(MW + 1))
I("v_mov_b32", V(MW + 3), s_nonce)
I("v_lshlrev_b32", v_t[0], 3, v_lane)
I("s_lshl_b32", st[0], s_prod, 7)
I("s_mov_b64", "exec", 0xFFFF)
I("buffer_store_dwordx2", V(MW + 2, 2), v_t[0], sWS, st[0], mods=f"offen offset:{WS_MODG} sc1")
I("s_mov_b64", "exec", -1)
a.label("L_nomod")
a.fence()

I("s_and_b32", st[0], s_wave, 5)
I("s_cmp_eq_u32", st[0], 5)
I("s_cbranch_scc1", "L_noWA2")
for n in range(NB1, 14):
    load_block(WA, n, sWQKV, v_a1)
    if n < 13:
        I("v_add_u32", v_a1, 32 * 2688, v_a1)
a.wait(vm=63)
I("s_branch", "L_x_ready")
a.label("L_noWA2")
a.wait(vm=0)
a.label("L_x_ready")
stamp()

S1, S2 = 214, 226
I("s_mov_b32", st[0], 0x3F803F80)
for i in range(10):
    for j in range(4):
        x = V(XR + 4 * i + j)
        I("v_dot2_f32_bf16", V(S1 + i), x, st[0], 0 if j == 0 else V(S1 + i))
        I("v_dot2_f32_bf16", V(S2 + i), x, x, 0 if j == 0 else V(S2 + i))
for i in (10, 11):
    I("v_mov_b32", V(S1 + i), 0)
    I("v_mov_b32", V(S2 + i), 0)
for gq in range(3):
    reduce4([V(S1 + 4 * gq + r) for r in range(4)])
    reduce4([V(S2 + 4 * gq + r) for r in range(4)])
for gq in range(3):
    ln_scalars(V(S1 + 4 * gq), V(S2 + 4 * gq), v_t[0], v_t[1], v_t[2])
for i in range(10):
    I("v_readlane_b32", s_stat[2 * i], V(S1 + 4 * (i // 4)), 16 * (i % 4))
    I("v_readlane_b32", s_stat[2 * i + 1], V(S2 + 4 * (i // 4)), 16 * (i % 4))
for i in range(10):
    I("v_mov_b32", v_t[4], s_stat[2 * i + 1])
    src = [V(XR + 4 * i + j) for j in range(4)]
    if UR + 8 * i + 8 > XR + 4 * i:
        for j in range(4):
            I("v_mov_b32", v_t[j], src[j])
        src = v_t[:4]
    for j in range(4):
        u0, u1 = V(UR + 8 * i + 2 * j), V(UR + 8 * i + 2 * j + 1)
        unpack(u0, u1, src[j])
        I("v_fma_f32", u0, u0, s_stat[2 * i], v_t[4])
        I("v_fma_f32", u1, u1, s_stat[2 * i], v_t[4])

I("s_and_b32", st[0], s_wave, 5)
I("s_cmp_eq_u32", st[0], 5)
I("s_cbranch_scc1", "L_noperm")
for n in range(14):
    a.wait(vm=min(63, 8 * (13 - n)))
    perm_block(WA, n)
I("s_cmp_lt_u32", s_wave, 4)
I("s_cbranch_scc1", "L_noperm")
I("s_sub_u32", st[0], s_wave, 4)
I("s_mul_i32", st[0], st[0], 14336)
I("s_add_u32", st[0], st[0], L_QW)
I("v_add_u32", v_t[0], st[0], v_l16)
for n in range(14):
    for j in range(2):
        I("ds_write_b128", v_t[0], WA.T(n, j), mods=f"offset:{(2 * n + j) * 1024}")
a.label("L_noperm")
a.fence()

I("s_cmp_lg_u32", s_wave, 7)
I("s_cbranch_scc1", "L_nomp1")
poll_modvec([0, 1], 214)
a.label("L_nomp1")
a.fence()
stamp()
barrier()
stamp()
I("s_and_b32", st[0], s_wave, 5)
I("s_cmp_lg_u32", st[0], 5)
I("s_cbranch_scc1", "L_noqw")
I("s_sub_u32", st[0], s_wave, 5)
I("s_mul_i32", st[0], st[0], 14336)
I("s_add_u32", st[0], st[0], L_QW)
I("v_add_u32", v_t[0], st[0], v_l16)
for n in range(14):
    for j in range(2):
        I("ds_read_b128", WA.T(n, j), v_t[0], mods=f"offset:{(2 * n + j) * 1024}")
        if (2 * n + j) % 8 == 7:
            a.wait(lgkm=4)
a.label("L_noqw")

GV, SV = 214, 222
I("s_mov_b64", "exec", s_m56)
I("v_lshlrev_b32", v_t[0], 5, v_lane)
I("v_add_u32", v_t[0], L_MODV, v_t[0])
I("ds_read_b128", V(SV, 4), v_t[0])
I("ds_read_b128", V(SV + 4, 4), v_t[0], mods="offset:16")
I("ds_read_b128", V(GV, 4), v_t[0], mods="offset:1792")
I("ds_read_b128", V(GV + 4, 4), v_t[0], mods="offset:1808")
I("s_mul_i32", st[0], s_wave, 10 * HP)
I("v_add_u32", v_t[1], st[0], v_l16)
a.wait(lgkm=0)
for i in range(10):
    for j in range(8):
        u = V(UR + 8 * i + j)
        I("v_fma_f32", u, u, V(GV + j), V(SV + j))
    pk = 232 + 4 * (i % 2)
    for j in range(4):
        I("v_cvt_pk_bf16_f32", V(pk + j), V(UR + 8 * i + 2 * j), V(UR + 8 * i + 2 * j + 1))
    I("ds_write_b128", v_t[1], V(pk, 4), mods=f"offset:{L_HT + i * HP}")
I("s_mov_b64", "exec", -1)
barrier()
stamp()

ACA = 134
FRA = 174


def gemm_A(tiles, swapped):
    nt = len(tiles)

    def reads(s):
        for k, t in enumerate(tiles):
            I("ds_read_b128", V(FRA + 20 * (s % 2) + 4 * k, 4), v_frag, mods=f"offset:{L_HT + t * 16 * HP + s * 64}")

    reads(0)
    for s in range(14):
        if s < 13:
            reads(s + 1)
            a.wait(lgkm=nt)
        else:
            a.wait(lgkm=0)
        for k in range(nt):
            f = V(FRA + 20 * (s % 2) + 4 * k, 4)
            for j in range(2):
                acc = V(ACA + 8 * k + 4 * j, 4)
                c = 0 if s == 0 else acc
                if swapped:
                    I("v_mfma_f32_16x16x32_bf16", acc, f, WA.T(s, j), c)
                else:
                    I("v_mfma_f32_16x16x32_bf16", acc, WA.T(s, j), f, c)


I("s_lshr_b32", st[0], s_wave, 1)
I("s_and_b32", st[0], st[0], 1)
I("s_cmp_ge_u32", s_wave, 4)
I("s_cbranch_scc1", "L_A_q")
I("s_and_b32", st[1], s_wave, 1)
I("s_cmp_eq_u32", st[1], 1)
I("s_cbranch_scc1", "L_A_v")
gemm_A([0, 1, 2, 3, 4], False)
I("s_mul_i32", st[1], st[0], 5120)
I("s_add_u32", st[1], st[1], L_K)
I("v_add_u32", v_t[0], st[1], v_l16)
for k in range(5):
    pk = FRA + 4 * k
    for r in range(4):
        I("v_cvt_pk_bf16_f32", V(pk + r), V(ACA + 8 * k + r), V(ACA + 8 * k + 4 + r))
    I("ds_write_b128", v_t[0], V(pk, 4), mods=f"offset:{1024 * k}")
I("s_branch", "L_A_done")
a.label("L_A_v")
a.fence()
gemm_A([0, 1, 2, 3, 4], True)
I("s_mul_i32", st[1], st[0], 5120)
I("s_add_u32", st[1], st[1], L_V)
I("v_add_u32", v_t[0], st[1], v_l16)
for k in range(5):
    pk = FRA + 4 * k
    for j in range(2):
        I("v_cvt_pk_bf16_f32", V(pk + 2 * j), V(ACA + 8 * k + 4 * j), V(ACA + 8 * k + 4 * j + 1))
        I("v_cvt_pk_bf16_f32", V(pk + 2 * j + 1), V(ACA + 8 * k + 4 * j + 2), V(ACA + 8 * k + 4 * j + 3))
    I("ds_write_b128", v_t[0], V(pk, 4), mods=f"offset:{1024 * k}")
I("s_branch", "L_A_done")
a.label("L_A_q")
a.fence()
I("s_and_b32", st[1], s_wave, 1)
I("s_mul_i32", st[2], st[1], 32 * HP)
I("v_add_u32", v_frag, st[2], v_frag)
gemm_A([1, 2], False)
I("v_subrev_u32", v_frag, st[2], v_frag)
I("s_lshl_b32", st[2], st[0], 12)
I("s_lshl_b32", st[1], st[1], 11)
I("s_add_u32", st[1], st[1], st[2])
I("s_add_u32", st[1], st[1], L_Q)
I("v_add_u32", v_t[0], st[1], v_l16)
I("v_cmp_ne_u32", "vcc", 3, v_g)
for k in range(2):
    pk = FRA + 4 * k
    for r in range(4):
        I("v_cvt_pk_bf16_f32", V(pk + r), V(ACA + 8 * k + r), V(ACA + 8 * k + 4 + r))
    I("v_cndmask_b32", V(pk + 2), 0, V(pk + 2), "vcc")
    I("v_cndmask_b32", V(pk + 3), 0, V(pk + 3), "vcc")
    I("ds_write_b128", v_t[0], V(pk, 4), mods=f"offset:{1024 * k}")
a.label("L_A_done")
a.fence()
barrier()
stamp()

WB = WSet(*chain(190, 224, 8))
WC = WSet(*chain(PE, PO, 14))
I("s_cmp_eq_u32", s_mem, 7)
I("s_cbranch_scc1", "L_nopfB")
set_rows(896)
I("s_lshr_b32", st[0], s_wave, 1)
I("s_and_b32", st[0], st[0], 1)
I("s_mul_i32", st[0], st[0], 8 * 28 * 896)
I("s_and_b32", st[1], s_wave, 1)
I("s_lshl_b32", st[1], st[1], 6)
I("s_add_u32", st[0], st[0], st[1])
I("s_lshl_b32", st[1], s_mem, 7)
I("s_add_u32", st[0], st[0], st[1])
I("v_mul_u32_u24", v_a1, 8 * 896, v_g)
I("v_lshl_add_u32", v_a1, v_c, 2, v_a1)
I("v_add_u32", v_a1, st[0], v_a1)
for n in range(8):
    load_block(WB, n, sWO, v_a1)
    if n < 7:
        I("v_add_u32", v_a1, 28 * 896, v_a1)
a.label("L_nopfB")

AT = 134
vQ, vK0, vK1, vVT0, vVT1 = V(AT, 4), V(AT + 4, 4), V(AT + 8, 4), V(AT + 12, 4), V(AT + 16, 4)
vS0, vS1, vP, vO0, vO1 = V(AT + 20, 4), V(AT + 24, 4), V(AT + 28, 4), V(AT + 32, 4), V(AT + 36, 4)
vsel = [V(AT + 40 + e) for e in range(4)]
u0, u1, mx, tm, tm2 = V(AT + 44), V(AT + 45), V(AT + 46), V(AT + 47), V(AT + 48)
I("s_lshr_b32", st[0], s_wave, 2)
I("s_and_b32", st[1], s_wave, 3)
I("s_lshl_b32", st[2], s_wave, 10)
I("s_add_u32", st[2], st[2], L_Q)
I("v_add_u32", v_t[0], st[2], v_l16)
I("ds_read_b128", vQ, v_t[0])
I("s_mul_i32", st[2], st[0], 5)
I("s_add_u32", st[2], st[2], st[1])
I("s_lshl_b32", st[2], st[2], 10)
I("s_add_u32", st[2], st[2], L_K)
I("v_add_u32", v_t[0], st[2], v_l16)
I("ds_read_b128", vK0, v_t[0])
I("ds_read_b128", vK1, v_t[0], mods="offset:1024")
I("ds_read_b64", vVT0[0:2], v_t[0], mods=f"offset:{L_V - L_K}")
I("ds_read_b64", vVT0[2:4], v_t[0], mods=f"offset:{L_V - L_K + 1024}")
I("ds_read_b64", vVT1[0:2], v_t[0], mods=f"offset:{L_V - L_K + 8}")
I("ds_read_b64", vVT1[2:4], v_t[0], mods=f"offset:{L_V - L_K + 1024 + 8}")
I("v_and_b32", v_t[1], 1, v_c)
I("v_cmp_eq_u32", s_mA, 1, v_t[1])
I("v_lshlrev_b32", v_t[2], 2, v_g)
I("v_sub_u32", v_t[2], v_c, v_t[2])
I("v_sub_u32", v_t[2], v_t[2], v_t[1])
I("v_cmp_le_i32", s_mB, 0, v_t[2])
I("v_cmp_le_i32", s_mC, 2, v_t[2])
I("v_mov_b32", v_t[3], 0x0C0C0100)
I("v_mov_b32", v_t[4], 0x01000C0C)
I("v_cndmask_b32", v_t[3], v_t[3], v_t[4], s_mA)
I("v_mov_b32", v_t[4], 0x0C0C0302)
I("v_mov_b32", v_t[5], 0x03020C0C)
I("v_cndmask_b32", v_t[4], v_t[4], v_t[5], s_mA)
I("v_mov_b32", v_t[5], 0x0C0C0C0C)
I("v_cndmask_b32", vsel[0], v_t[3], v_t[5], s_mB)
I("v_cndmask_b32", vsel[1], v_t[4], v_t[5], s_mC)
I("v_cndmask_b32", vsel[2], v_t[5], v_t[3], s_mB)
I("v_cndmask_b32", vsel[3], v_t[5], v_t[4], s_mC)
I("s_or_b32", st[2], s_cl, st[1])
I("s_cmp_eq_u32", st[2], 0)
I("s_cselect_b64", S(26, 2), 0, -1)
I("s_or_b64", s_mD, s_mB, S(26, 2))
I("s_or_b64", S(26, 2), s_mC, S(26, 2))
a.wait(lgkm=4)
I("v_mfma_f32_16x16x32_bf16", vS0, vK0, vQ, 0)
I("v_mfma_f32_16x16x32_bf16", vS1, vK1, vQ, 0)
I("v_cndmask_b32", vS0[0], vS0[0], vS0[1], s_mA)
I("v_cndmask_b32", vS0[2], vS0[2], vS0[3], s_mA)
I("v_cndmask_b32", vS1[0], vS1[0], vS1[1], s_mA)
I("v_cndmask_b32", vS1[2], vS1[2], vS1[3], s_mA)
I("v_cndmask_b32", u0, vS0[0], vS1[0], s_mB)
I("v_cndmask_b32", u1, vS0[2], vS1[2], s_mC)
bf16r_pair(u0, u1, u0, u1, tm)
I("v_mul_f32", u0, f2u(28 ** -0.5), u0)
I("v_mul_f32", u1, f2u(28 ** -0.5), u1)
bf16r_pair(u0, u1, u0, u1, tm)
I("v_mov_b32", tm, f2u(-1e9))
I("v_cndmask_b32", u0, tm, u0, s_mD)
I("v_cndmask_b32", u1, tm, u1, S(26, 2))
I("v_max_f32", mx, u0, u1)
xrow_reduce("v_max_f32", mx, tm)
I("v_sub_f32", u0, u0, mx)
I("v_sub_f32", u1, u1, mx)
I("v_mul_f32", u0, f2u(1.4426950408889634), u0)
I("v_mul_f32", u1, f2u(1.4426950408889634), u1)
I("v_exp_f32", u0, u0)
I("v_exp_f32", u1, u1)
I("v_add_f32", mx, u0, u1)
xrow_reduce("v_add_f32", mx, tm)
I("v_rcp_f32", mx, mx)
I("v_mul_f32", u0, u0, mx)
I("v_mul_f32", u1, u1, mx)
I("v_cvt_pk_bf16_f32", tm, u0, u1)
for e in range(4):
    I("v_perm_b32", vP[e], tm, tm, vsel[e])
a.wait(lgkm=0)
I("v_mfma_f32_16x16x32_bf16", vO0, vVT0, vP, 0)
I("v_mfma_f32_16x16x32_bf16", vO1, vVT1, vP, 0)
I("v_cmp_ne_u32", "vcc", 3, v_g)
I("s_lshl_b32", st[2], st[1], 4)
I("s_lshl_b32", st[3], s_mem, 1)
I("s_add_u32", st[2], st[2], st[3])
I("s_add_u32", st[2], st[2], st[0])
I("s_lshl_b32", st[2], st[2], 10)
I("s_lshl_b32", st[3], s_cl, 16)
I("s_add_u32", st[2], st[2], st[3])
I("s_add_u32", st[2], st[2], WS_OX)
for r in range(4):
    I("v_cvt_pk_bf16_f32", vS0[r], vO0[r], vO1[r])
I("v_cndmask_b32", vS0[2], 0, vS0[2], "vcc")
I("v_cndmask_b32", vS0[3], 0, vS0[3], "vcc")
I("buffer_store_dwordx4", vS0, v_l16, sWS, st[2], mods="offen sc1")
a.wait(vm=0)
stamp()
barrier()
I("s_cmp_lg_u32", s_wave, 7)
I("s_cbranch_scc1", "L_nf1")
set_flag(0)
a.label("L_nf1")
I("s_cmp_eq_u32", s_mem, 7)
I("s_cbranch_scc1", "L_end")

set_rows(3584)
I("s_lshl_b32", st[0], s_mem, 9)
I("s_lshl_b32", st[1], s_wave, 6)
I("s_add_u32", st[0], st[0], st[1])
I("v_mul_u32_u24", v_a2, 8 * 3584, v_g)
I("v_lshl_add_u32", v_a2, v_c, 2, v_a2)
I("v_add_u32", v_a2, st[0], v_a2)
XB = V(186, 4)
I("s_lshr_b32", st[0], s_wave, 1)
I("s_lshl_b32", st[0], st[0], 4)
I("s_add_u32", st[0], st[0], s_R0)
I("s_mul_i32", st[0], st[0], 896)
I("s_and_b32", st[1], s_wave, 1)
I("s_lshl_b32", st[1], st[1], 6)
I("s_add_u32", st[0], st[0], st[1])
I("s_lshl_b32", st[1], s_mem, 7)
I("s_add_u32", st[5], st[0], st[1])
I("v_mul_u32_u24", v_a3, 896, v_c)
I("v_lshl_add_u32", v_a3, v_g, 4, v_a3)
I("buffer_load_dwordx4", XB, v_a3, sX, st[5], mods="offen")
for n in range(8):
    perm_block(WB, n)
I("s_cmp_lg_u32", s_wave, 7)
I("s_cbranch_scc1", "L_w7_skip1")
poll_modvec([2, 3, 4, 5], 134)
poll_flags(0, 8)
a.label("L_w7_skip1")
a.fence()
stamp()
barrier()
stamp()

OR_ = 134
I("s_lshl_b32", st[0], s_cl, 16)
I("s_lshl_b32", st[1], s_wave, 13)
I("s_add_u32", st[0], st[0], st[1])
I("s_add_u32", st[0], st[0], WS_OX)
for k in range(8):
    I("buffer_load_dwordx4", V(OR_ + 4 * k, 4), v_l16, sWS, st[0], mods=f"offen offset:{(k % 4) * 1024} sc1")
    if k == 3:
        I("s_add_u32", st[0], st[0], 4096)
for n in range(7):
    load_block(WC, n, sW1, v_a2)
    I("v_add_u32", v_a2, 32 * 3584, v_a2)
I("v_add_u32", v_t[0], st[1], v_l16)
for k in range(8):
    a.wait(vm=56 + 7 - k)
    I("ds_write_b128", v_t[0], V(OR_ + 4 * k, 4), mods=f"offset:{L_OT + k * 1024}")
barrier()
stamp()
for n in range(7, 14):
    load_block(WC, n, sW1, v_a2)
    if n < 13:
        I("v_add_u32", v_a2, 32 * 3584, v_a2)
ACB = 134
FRB = 150
I("s_lshr_b32", st[0], s_wave, 2)
I("s_lshl_b32", st[0], st[0], 15)
I("s_lshr_b32", st[1], s_wave, 1)
I("s_and_b32", st[1], st[1], 1)
I("s_lshl_b32", st[2], st[1], 13)
I("s_add_u32", st[0], st[0], st[2])
I("v_add_u32", v_t[0], st[0], v_l16)


def readsB(s):
    for m in range(2):
        I("ds_read_b128", V(FRB + 8 * (s % 4) + 4 * m, 4), v_t[0], mods=f"offset:{L_OT + m * 16384 + s * 1024}")


for s in range(3):
    readsB(s)
for s in range(8):
    if s + 3 < 8:
        readsB(s + 3)
        a.wait(lgkm=6)
    else:
        a.wait(lgkm=2 * (7 - s))
    for m in range(2):
        for j in range(2):
            acc = V(ACB + 8 * m + 4 * j, 4)
            I("v_mfma_f32_16x16x32_bf16", acc, WB.T(s, j), V(FRB + 8 * (s % 4) + 4 * m, 4), 0 if s == 0 else acc)
I("s_lshl_b32", st[0], s_wave, 11)
I("s_add_u32", st[0], st[0], L_PR)
I("v_add_u32", v_t[0], st[0], v_l16)
I("s_xor_b32", st[0], s_wave, 2)
I("s_lshl_b32", st[0], st[0], 11)
I("s_add_u32", st[0], st[0], L_PR)
I("v_add_u32", v_t[1], st[0], v_l16)
I("s_cmp_eq_u32", st[1], 0)
I("s_cbranch_scc1", "L_B_k0")
I("ds_write_b128", v_t[0], V(ACB, 4))
I("ds_write_b128", v_t[0], V(ACB + 4, 4), mods="offset:1024")
a.wait(lgkm=0)
for r in range(8):
    I("v_mov_b32", V(ACB + r), V(ACB + 8 + r))
I("s_branch", "L_B_red")
a.label("L_B_k0")
a.fence()
I("ds_write_b128", v_t[0], V(ACB + 8, 4))
I("ds_write_b128", v_t[0], V(ACB + 12, 4), mods="offset:1024")
a.label("L_B_red")
a.fence()
barrier()
I("ds_read_b128", V(ACB + 8, 4), v_t[1])
I("ds_read_b128", V(ACB + 12, 4), v_t[1], mods="offset:1024")
GA = 150
I("s_and_b32", st[0], s_wave, 1)
I("s_lshl_b32", st[0], st[0], 7)
I("s_lshl_b32", st[1], s_mem, 8)
I("s_add_u32", st[0], st[0], st[1])
I("s_add_u32", st[4], st[0], L_MODV)
I("v_lshlrev_b32", v_t[2], 5, v_g)
I("v_add_u32", v_t[2], st[4], v_t[2])
I("ds_read_b128", V(GA, 4), v_t[2], mods=f"offset:{2 * 1792}")
I("ds_read_b128", V(GA + 4, 4), v_t[2], mods=f"offset:{2 * 1792 + 16}")
a.wait(lgkm=0)
for r in range(8):
    I("v_add_f32", V(ACB + r), V(ACB + r), V(ACB + 8 + r))
X1 = V(182, 4)
E = 160
XF = 168
a.wait(vm=63)
for r in range(4):
    bf16r_pair(V(E + 2 * r), V(E + 2 * r + 1), V(ACB + r), V(ACB + 4 + r), v_t[3])
for k in range(8):
    I("v_mul_f32", V(E + k), V(E + k), V(GA + k))
for r in range(4):
    bf16r_pair(V(E + 2 * r), V(E + 2 * r + 1), V(E + 2 * r), V(E + 2 * r + 1), v_t[3])
    unpack(V(XF + 2 * r), V(XF + 2 * r + 1), XB[r])
for k in range(8):
    I("v_add_f32", V(E + k), V(E + k), V(XF + k))
for r in range(4):
    I("v_cvt_pk_bf16_f32", X1[r], V(E + 2 * r), V(E + 2 * r + 1))
I("s_mov_b32", st[0], 0x3F803F80)
SS = V(160, 2)
for r in range(4):
    I("v_dot2_f32_bf16", SS[0], X1[r], st[0], 0 if r == 0 else SS[0])
    I("v_dot2_f32_bf16", SS[1], X1[r], X1[r], 0 if r == 0 else SS[1])
xrow_reduce("v_add_f32", SS[0], v_t[3])
xrow_reduce("v_add_f32", SS[1], v_t[4])
I("s_lshr_b32", st[0], s_wave, 1)
I("s_mul_i32", st[0], st[0], 16 * 896)
I("s_and_b32", st[1], s_wave, 1)
I("s_lshl_b32", st[2], st[1], 6)
I("s_add_u32", st[0], st[0], st[2])
I("s_lshl_b32", st[2], s_mem, 7)
I("s_add_u32", st[0], st[0], st[2])
I("s_lshl_b32", st[2], s_cl, 16)
I("s_add_u32", st[0], st[0], st[2])
I("s_add_u32", st[0], st[0], WS_X1)
I("buffer_store_dwordx4", X1, v_a3, sWS, st[0], mods="offen sc1")
I("s_lshl_b32", st[0], s_mem, 1)
I("s_add_u32", st[0], st[0], st[1])
I("s_lshl_b32", st[0], st[0], 9)
I("s_lshr_b32", st[1], s_wave, 1)
I("s_lshl_b32", st[1], st[1], 7)
I("s_add_u32", st[0], st[0], st[1])
I("s_lshl_b32", st[1], s_cl, 13)
I("s_add_u32", st[0], st[0], st[1])
I("s_add_u32", st[0], st[0], WS_ST)
I("v_lshlrev_b32", v_t[0], 3, v_lane)
I("s_mov_b64", "exec", 0xFFFF)
I("buffer_store_dwordx2", SS, v_t[0], sWS, st[0], mods="offen sc1")
I("s_mov_b64", "exec", -1)
a.wait(vm=0)
stamp()
barrier()
I("s_cmp_lg_u32", s_wave, 7)
I("s_cbranch_scc1", "L_nf2")
set_flag(1)
a.label("L_nf2")
for n in range(14):
    perm_block(WC, n)
I("s_mul_i32", st[0], s_wave, 7 * 32 * 896)
I("s_lshl_b32", st[1], s_mem, 7)
I("s_add_u32", st[0], st[0], st[1])
I("v_mul_u32_u24", v_a1, 8 * 896, v_g)
I("v_lshl_add_u32", v_a1, v_c, 2, v_a1)
I("v_add_u32", v_a1, st[0], v_a1)
set_rows(896)
e1, o1 = chain(190, 224, 8)
e2, o2 = chain(PE, PO, 6)
WD = WSet(e1 + e2, o1 + o2)
G2, SB = 166, 174
I("v_lshlrev_b32", v_t[0], 5, v_lane)
I("v_min_u32", v_t[0], 55 * 32, v_t[0])
I("v_add_u32", v_t[0], L_MODV, v_t[0])
I("ds_read_b128", V(SB, 4), v_t[0], mods=f"offset:{3 * 1792}")
I("ds_read_b128", V(SB + 4, 4), v_t[0], mods=f"offset:{3 * 1792 + 16}")
I("ds_read_b128", V(G2, 4), v_t[0], mods=f"offset:{4 * 1792}")
I("ds_read_b128", V(G2 + 4, 4), v_t[0], mods=f"offset:{4 * 1792 + 16}")
I("s_cmp_lg_u32", s_wave, 7)
I("s_cbranch_scc1", "L_w7_skip2")
poll_flags(1, 7)
a.label("L_w7_skip2")
a.fence()
stamp()
barrier()
stamp()

X1R = 134
STV = V(186, 4)
I("s_lshl_b32", st[0], s_cl, 13)
I("s_lshl_b32", st[1], s_wave, 6)
I("s_add_u32", st[0], st[0], st[1])
I("s_add_u32", st[0], st[0], WS_ST)
I("v_lshrrev_b32", v_t[0], 2, v_lane)
I("v_lshlrev_b32", v_t[0], 9, v_t[0])
I("v_and_b32", v_t[1], 3, v_lane)
I("v_lshl_add_u32", v_t[0], v_t[1], 4, v_t[0])
I("v_cmp_gt_u32", "vcc", 56, v_lane)
I("v_mov_b32", v_t[1], 0x10000000)
I("v_cndmask_b32", v_t[0], v_t[1], v_t[0], "vcc")
I("buffer_load_dwordx4", STV, v_t[0], sWS, st[0], mods="offen sc1")
I("s_lshl_b32", st[0], s_cl, 16)
I("s_mul_i32", st[1], s_wave, 8 * 896)
I("s_add_u32", st[0], st[0], st[1])
I("s_add_u32", st[0], st[0], WS_X1)
for i in range(8):
    I("buffer_load_dwordx4", V(X1R + 4 * i, 4), v_a0, sWS, st[0], mods=f"offen offset:{(i % 4) * 896} sc1")
    if i == 3:
        I("s_add_u32", st[0], st[0], 4 * 896)
for n in range(6):
    load_block(WD, n, sW2, v_a1, imm=64 * (n % 2))
    if n % 2 == 1:
        I("v_add_u32", v_a1, 32 * 896, v_a1)
a.wait(vm=48 + 8)
for k in range(4):
    for r in (4, 8):
        I("v_add_f32_dpp", STV[k], STV[k], STV[k], mods=f"row_ror:{r} row_mask:0xf bank_mask:0xf")
for k in range(4):
    xrow_reduce("v_add_f32", STV[k], v_t[k])
ln_scalars(STV[0], STV[1], v_t[0], v_t[1], v_t[2])
ln_scalars(STV[2], STV[3], v_t[3], v_t[4], v_t[5])
for i in range(8):
    I("v_readlane_b32", s_stat[2 * i], STV[2 * (i % 2)], i // 2)
    I("v_readlane_b32", s_stat[2 * i + 1], STV[2 * (i % 2) + 1], i // 2)
I("s_mul_i32", st[0], s_wave, 8 * HP)
I("v_add_u32", v_t[1], st[0], v_l16)
a.wait(lgkm=0)
I("s_mov_b64", "exec", s_m56)
for i in range(8):
    a.wait(vm=48 + 7 - i)
    I("v_mov_b32", v_t[0], s_stat[2 * i + 1])
    for j in range(4):
        x = V(X1R + 4 * i + j)
        unpack(v_t[2], v_t[3], x)
        I("v_fma_f32", v_t[2], v_t[2], s_stat[2 * i], v_t[0])
        I("v_fma_f32", v_t[3], v_t[3], s_stat[2 * i], v_t[0])
        I("v_fma_f32", v_t[2], v_t[2], V(G2 + 2 * j), V(SB + 2 * j))
        I("v_fma_f32", v_t[3], v_t[3], V(G2 + 2 * j + 1), V(SB + 2 * j + 1))
        I("v_cvt_pk_bf16_f32", x, v_t[2], v_t[3])
    I("ds_write_b128", v_t[1], V(X1R + 4 * i, 4), mods=f"offset:{L_HT + i * HP}")
I("s_mov_b64", "exec", -1)
barrier()
stamp()
for n in range(6, 8):
    load_block(WD, n, sW2, v_a1, imm=64 * (n % 2))
I("v_add_u32", v_a1, 32 * 896, v_a1)
ACC_ = 134
FRC = 166


def readC(s, m):
    I("ds_read_b128", V(FRC + 4 * m, 4), v_frag, mods=f"offset:{L_HT + m * 16 * HP + s * 64}")


for m in range(4):
    readC(0, m)
for s in range(14):
    for m in range(4):
        last = (s == 13)
        a.wait(lgkm=(3 - m) if last else 3)
        for j in range(2):
            acc = V(ACC_ + 8 * m + 4 * j, 4)
            I("v_mfma_f32_16x16x32_bf16", acc, WC.T(s, j), V(FRC + 4 * m, 4), 0 if s == 0 else acc)
        if not last:
            readC(s + 1, m)
    if 1 <= s <= 6:
        n = 8 + s - 1
        load_block(WD, n, sW2, v_a1, imm=64 * (n % 2))
        if n % 2 == 1 and n < 13:
            I("v_add_u32", v_a1, 32 * 896, v_a1)
I("s_lshl_b32", st[0], s_mem, 3)
I("s_add_u32", st[0], st[0], s_wave)
I("s_lshl_b32", st[0], st[0], 10)
I("s_lshl_b32", st[1], s_cl, 18)
I("s_add_u32", st[0], st[0], st[1])
I("s_add_u32", st[0], st[0], WS_FX)
for m in range(4):
    for k in range(8):
        x = V(ACC_ + 8 * m + k)
        t = v_t[k]
        I("v_mul_f32", t, f2u(-1.4426950408889634), x)
        I("v_exp_f32", t, t)
    for k in range(8):
        t = v_t[k]
        I("v_add_f32", t, 1.0, t)
        I("v_rcp_f32", t, t)
    for k in range(8):
        x = V(ACC_ + 8 * m + k)
        I("v_mul_f32", x, x, v_t[k])
    for r in range(4):
        I("v_cvt_pk_bf16_f32", V(FRC + 4 * m + r), V(ACC_ + 8 * m + r), V(ACC_ + 8 * m + 4 + r))
    I("buffer_store_dwordx4", V(FRC + 4 * m, 4), v_l16, sWS, st[0], mods="offen sc1")
    if m < 3:
        I("s_add_u32", st[0], st[0], 56 * 1024)
a.wait(vm=0)
stamp()
barrier()
I("s_cmp_lg_u32", s_wave, 7)
I("s_cbranch_scc1", "L_nf3")
set_flag(2)
a.label("L_nf3")
for n in range(14):
    perm_block(WD, n)
I("s_cmp_lg_u32", s_wave, 7)
I("s_cbranch_scc1", "L_w7_skip3")
poll_flags(2, 7)
a.label("L_w7_skip3")
a.fence()
stamp()
barrier()
stamp()

FS = [46, 102, 134]
ACD = [162, 162]
I("s_mul_i32", st[0], s_wave, 7 * 1024)
I("s_lshl_b32", st[1], s_cl, 18)
I("s_add_u32", st[0], st[0], st[1])
I("s_add_u32", st[0], st[0], WS_FX)


def loadF(m):
    for s in range(7):
        I("buffer_load_dwordx4", V(FS[m % 3] + 4 * s, 4), v_l16, sWS, st[0], mods=f"offen offset:{(s % 4) * 1024} sc1")
        if s == 3:
            I("s_add_u32", st[0], st[0], 4096)
    I("s_add_u32", st[0], st[0], 56 * 1024 - 4096)


for m in range(3):
    loadF(m)
I("s_lshl_b32", st[1], s_wave, 11)
I("v_add_u32", v_t[0], st[1], v_l16)
I("v_add_u32", v_t[1], 65536, v_t[0])
for m in range(4):
    acc0 = ACD[m % 2]
    for s in range(7):
        if m == 0:
            a.wait(vm=14 + 6 - s)
        elif m == 1:
            a.wait(vm=14 + 6 - s)
        elif m == 2:
            a.wait(vm=7 + 6 - s)
        else:
            a.wait(vm=6 - s)
        for hf in range(2):
            for j in range(2):
                acc = V(acc0 + 8 * hf + 4 * j, 4)
                I("v_mfma_f32_16x16x32_bf16", acc, WD.T(2 * s + hf, j), V(FS[m % 3] + 4 * s, 4), 0 if s == 0 else acc)
    if m == 0:
        loadF(3)
    for hf in range(2):
        owner = 2 * m + hf
        base = v_t[0] if owner < 4 else v_t[1]
        off = (owner % 4) * 16384
        I("ds_write_b128", base, V(acc0 + 8 * hf, 4), mods=f"offset:{off}")
        I("ds_write_b128", base, V(acc0 + 8 * hf + 4, 4), mods=f"offset:{off + 1024}")
    a.wait(lgkm=0)
barrier()
stamp()
I("s_lshl_b32", st[1], s_wave, 14)
I("v_add_u32", v_t[0], st[1], v_l16)
RR = 20
for src in range(8):
    I("ds_read_b128", V(RR + 8 * src, 4), v_t[0], mods=f"offset:{src * 2048}")
    I("ds_read_b128", V(RR + 8 * src + 4, 4), v_t[0], mods=f"offset:{src * 2048 + 1024}")
    if src == 6:
        a.wait(lgkm=8)
GB = 100
I("v_lshlrev_b32", v_t[2], 5, v_g)
I("v_add_u32", v_t[2], st[4], v_t[2])
I("ds_read_b128", V(GB, 4), v_t[2], mods=f"offset:{5 * 1792}")
I("ds_read_b128", V(GB + 4, 4), v_t[2], mods=f"offset:{5 * 1792 + 16}")
a.wait(lgkm=0)
for src in range(1, 8):
    for r in range(8):
        I("v_add_f32", V(RR + r), V(RR + r), V(RR + 8 * src + r))
E, XF = 110, 120
for r in range(4):
    bf16r_pair(V(E + 2 * r), V(E + 2 * r + 1), V(RR + r), V(RR + 4 + r), v_t[3])
for k in range(8):
    I("v_mul_f32", V(E + k), V(E + k), V(GB + k))
for r in range(4):
    bf16r_pair(V(E + 2 * r), V(E + 2 * r + 1), V(E + 2 * r), V(E + 2 * r + 1), v_t[3])
    unpack(V(XF + 2 * r), V(XF + 2 * r + 1), X1[r])
for k in range(8):
    I("v_add_f32", V(E + k), V(E + k), V(XF + k))
for r in range(4):
    I("v_cvt_pk_bf16_f32", V(130 + r), V(E + 2 * r), V(E + 2 * r + 1))
I("buffer_store_dwordx4", V(130, 4), v_a3, sOUT, st[5], mods="offen")
stamp()
a.label("L_end")
I("s_endpgm")

a.raw(f""".section .rodata,"a"
.p2align 6
.amdhsa_kernel {NAME}_kernel
  .amdhsa_next_free_vgpr 256
  .amdhsa_next_free_sgpr 102
  .amdhsa_accum_offset 256
  .amdhsa_group_segment_fixed_size 0
  .amdhsa_kernarg_size 88
  .amdhsa_user_sgpr_count 2
  .amdhsa_user_sgpr_kernarg_segment_ptr 1
  .amdhsa_system_sgpr_workgroup_id_x 1
  .amdhsa_float_denorm_mode_32 3
  .amdhsa_float_denorm_mode_16_64 3
.end_amdhsa_kernel""")

out = sys.argv[1] if len(sys.argv) > 1 and not sys.argv[1].startswith("--") else f"cdna_kernels/{NAME}.s"
open(out, "w").write(a.text())
print(f"wrote {out}: {a.ninstr} instructions, {a.nops} nop pads, {stamp_idx[0]} stamps")
```

```python
import re


class Reg:
    def __init__(self, kind, n, cnt=1):
        self.kind, self.n, self.cnt = kind, n, cnt
        self.neg = False

    def __str__(self):
        s = f"{self.kind}{self.n}" if self.cnt == 1 else f"{self.kind}[{self.n}:{self.n + self.cnt - 1}]"
        return ("-" if self.neg else "") + s

    def regs(self):
        return [(self.kind, self.n + i) for i in range(self.cnt)]

    def __getitem__(self, i):
        if isinstance(i, slice):
            a = i.start or 0
            b = i.stop if i.stop is not None else self.cnt
            assert 0 <= a < b <= self.cnt
            return Reg(self.kind, self.n + a, b - a)
        assert 0 <= i < self.cnt
        return Reg(self.kind, self.n + i, 1)

    def __neg__(self):
        r = Reg(self.kind, self.n, self.cnt)
        r.neg = True
        return r


def V(n, cnt=1):
    assert 0 <= n and n + cnt <= 256, (n, cnt)
    if cnt > 1:
        assert n % 2 == 0, ("vgpr tuple alignment", n, cnt)
    return Reg("v", n, cnt)


def S(n, cnt=1):
    assert 0 <= n and n + cnt <= 102, (n, cnt)
    if cnt == 2:
        assert n % 2 == 0
    if cnt >= 4:
        assert n % 4 == 0
    return Reg("s", n, cnt)


VCC = [("s", 106), ("s", 107)]
EXEC = [("s", 126), ("s", 127)]

TRANS = ("v_exp_f32", "v_rcp_f32", "v_rsq_f32", "v_sqrt_f32", "v_log_f32")


def _regs(o):
    if isinstance(o, Reg):
        return o.regs()
    if o == "vcc":
        return list(VCC)
    if o == "exec":
        return list(EXEC)
    return []


def fmt(o):
    if isinstance(o, float):
        return repr(o)
    if isinstance(o, int):
        return str(o) if -16 <= o <= 64 else hex(o & 0xFFFFFFFF)
    return str(o)


class Asm:
    def __init__(self):
        self.lines = []
        self.t = 0
        self.wr = {}
        self.mfma_c_read = {}
        self.store_data = {}
        self.nops = 0
        self.ninstr = 0
        self.uid = 0
        self.est = 0.0
        self.vm_n = 0
        self.lg_n = 0
        self.vm_done = 0
        self.lg_done = 0

    def raw(self, s):
        self.lines.append(s)

    def comment(self, s):
        self.lines.append("    ; " + s)

    def label(self, name):
        self.lines.append(f"{name}:")

    def newlabel(self, base="L"):
        self.uid += 1
        return f"{base}_{self.uid}"

    def fence(self, n=12):
        need = 0
        for r, (t, k) in self.wr.items():
            lim = {"mfma4": 8, "mfma8": 12, "valu": 5, "trans": 5, "dot": 5}.get(k, 0)
            need = max(need, lim - (self.t - t))
        if need > 0:
            self._nop(need)

    def _nop(self, n):
        while n > 0:
            k = min(n, 16)
            self.lines.append(f"    s_nop {k - 1}")
            self.t += k
            self.nops += 1
            self.ninstr += 1
            n -= k

    def _classify(self, op):
        if op.startswith("v_mfma"):
            return "mfma"
        if op.startswith("v_"):
            return "valu"
        if op.startswith("buffer_") or op.startswith("global_"):
            return "vmem"
        if op.startswith("ds_"):
            return "ds"
        if op.startswith("s_load") or op.startswith("s_mem") or op.startswith("s_buffer"):
            return "smem"
        return "salu"

    def I(self, op, *ops, mods=""):
        cls = self._classify(op)
        ops = list(ops)
        dsts, srcs = [], []
        is_dpp = "row_" in mods or "quad_perm" in mods or "wave_" in mods
        if cls == "mfma":
            dsts = _regs(ops[0])
            a, b, c = _regs(ops[1]), _regs(ops[2]), _regs(ops[3])
            srcs = a + b + c
        elif cls == "valu":
            if op.startswith("v_permlane") and "swap" in op:
                dsts = _regs(ops[0]) + _regs(ops[1])
                srcs = list(dsts)
            elif op.startswith("v_cmp"):
                dsts = _regs(ops[0])
                srcs = sum((_regs(o) for o in ops[1:]), [])
            elif op in ("v_fmac_f32", "v_dot2c_f32_bf16", "v_writelane_b32"):
                dsts = _regs(ops[0])
                srcs = sum((_regs(o) for o in ops), [])
            elif op.startswith("v_add_co") or op.startswith("v_addc_co"):
                dsts = _regs(ops[0]) + _regs(ops[1])
                srcs = sum((_regs(o) for o in ops[2:]), [])
            else:
                dsts = _regs(ops[0])
                srcs = sum((_regs(o) for o in ops[1:]), [])
                if is_dpp:
                    srcs += _regs(ops[0])
        elif cls == "vmem":
            if "_store" in op:
                srcs = sum((_regs(o) for o in ops), [])
            elif " lds" in (" " + mods):
                srcs = sum((_regs(o) for o in ops), [])
            else:
                dsts = _regs(ops[0])
                srcs = sum((_regs(o) for o in ops[1:]), [])
        elif cls == "ds":
            if "write" in op:
                srcs = sum((_regs(o) for o in ops), [])
            else:
                dsts = _regs(ops[0])
                srcs = sum((_regs(o) for o in ops[1:]), [])
        elif cls == "smem":
            dsts = _regs(ops[0])
            srcs = sum((_regs(o) for o in ops[1:]), [])
        else:
            if op.startswith("s_cmp") or op.startswith("s_cbranch") or op.startswith("s_branch") or op in (
                    "s_waitcnt", "s_barrier", "s_nop", "s_sleep", "s_endpgm", "s_setprio"):
                srcs = sum((_regs(o) for o in ops), [])
            else:
                dsts = _regs(ops[0])
                srcs = sum((_regs(o) for o in ops[1:]), [])
                if "saveexec" in op:
                    dsts += EXEC

        need = 0

        def req(r, n):
            nonlocal need
            t, k = self.wr[r]
            need = max(need, n - (self.t - t))

        VALUK = ("valu", "trans", "dot")
        for r in srcs:
            if r not in self.wr:
                continue
            t, k = self.wr[r]
            if k in ("mfma4", "mfma8"):
                n = 8 if k == "mfma4" else 12
                if cls == "mfma":
                    cset = set(_regs(ops[3]))
                    abset = set(_regs(ops[1]) + _regs(ops[2]))
                    if r in abset:
                        req(r, n)
                    elif r in cset:
                        pass
                elif cls in ("valu", "vmem", "ds"):
                    req(r, n)
            elif k in VALUK:
                if r[0] == "v":
                    if cls == "mfma":
                        req(r, 3 if k == "dot" else 2)
                    elif cls == "valu":
                        if k == "dot":
                            if not (op.startswith("v_dot2") and _regs(ops[-1]) == [r] and r not in sum((_regs(o) for o in ops[1:-1]), [])):
                                req(r, 3)
                        if op.startswith("v_readlane") or op.startswith("v_readfirstlane"):
                            req(r, 1)
                        if is_dpp or op.startswith("v_permlane"):
                            req(r, 2)
                        if k == "trans" and op not in TRANS:
                            req(r, 1)
                    elif cls in ("vmem", "ds"):
                        if k == "dot":
                            req(r, 3)
                        if k == "trans":
                            req(r, 1)
                else:
                    if cls == "vmem":
                        req(r, 5)
                    elif cls == "valu":
                        if op.startswith("v_readlane") or op.startswith("v_writelane"):
                            req(r, 4)
                        else:
                            req(r, 2)
                    elif cls == "mfma":
                        req(r, 4)
                    elif cls in ("salu", "smem"):
                        req(r, 1)
        for r in dsts:
            if r in self.wr:
                t, k = self.wr[r]
                if k in ("mfma4", "mfma8") and cls in ("valu", "vmem", "ds"):
                    req(r, 8 if k == "mfma4" else 12)
                if k == "dot" and cls == "valu" and not op.startswith("v_dot2"):
                    req(r, 3)
            if cls == "valu" and r in self.mfma_c_read:
                need = max(need, 7 - (self.t - self.mfma_c_read[r]))
            if r in self.store_data and cls in ("valu", "mfma", "vmem", "ds"):
                need = max(need, 2 - (self.t - self.store_data[r]))
        if need > 0:
            self._nop(need)

        txt = "    " + op
        if ops:
            txt += " " + ", ".join(fmt(o) for o in ops)
        if mods:
            txt += " " + mods
        self.lines.append(txt)
        self.ninstr += 1
        self.est += {"mfma": 14.5, "valu": 3.8 if op in TRANS else 2.4, "vmem": 5.0, "ds": 3.0, "smem": 2.0, "salu": 1.5}[cls]
        tok = None
        if cls == "vmem":
            tok = self.vm_n
            self.vm_n += 1
        elif cls == "ds":
            tok = self.lg_n
            self.lg_n += 1
        self.t += 1
        if op == "s_nop":
            self.t += ops[0]
        kind = cls
        if cls == "mfma":
            kind = "mfma8" if "32x32" in op else "mfma4"
            for r in _regs(ops[3]):
                self.mfma_c_read[r] = self.t
        elif cls == "valu":
            kind = "trans" if op in TRANS else ("dot" if op.startswith("v_dot") else "valu")
        for r in dsts:
            self.wr[r] = (self.t, kind)
        if cls == "vmem" and "_store" in op and ("x4" in op or "x3" in op):
            for r in _regs(ops[0] if op.startswith("buffer") else ops[1]):
                self.store_data[r] = self.t
        return tok

    def wait_vm(self, tok):
        if tok is None or tok < self.vm_done:
            return
        n = self.vm_n - tok - 1
        if n <= 63:
            self.wait(vm=n)
        else:
            self.wait(vm=63)
        self.vm_done = max(self.vm_done, tok + 1)

    def wait_lg(self, tok):
        if tok is None or tok < self.lg_done:
            return
        n = self.lg_n - tok - 1
        self.wait(lgkm=min(n, 15))
        self.lg_done = max(self.lg_done, tok + 1)

    def lg_room(self, k=1):
        out = self.lg_n - self.lg_done
        if out + k > 15:
            self.wait_lg(self.lg_n - 1 - (15 - k))

    def save(self):
        return (self.vm_n, self.lg_n, self.vm_done, self.lg_done, self.est)

    def restore(self, stt):
        self.vm_n, self.lg_n, self.vm_done, self.lg_done, self.est = stt

    def wait(self, vm=None, lgkm=None):
        parts = []
        if vm is not None:
            assert 0 <= vm <= 63, vm
            parts.append(f"vmcnt({vm})")
        if lgkm is not None:
            assert 0 <= lgkm <= 15, lgkm
            parts.append(f"lgkmcnt({lgkm})")
        self.I("s_waitcnt", " ".join(parts))
        if vm is not None:
            self.vm_done = max(self.vm_done, self.vm_n - vm)
        if lgkm is not None:
            self.lg_done = max(self.lg_done, self.lg_n - lgkm)

    def text(self):
        return "\n".join(self.lines) + "\n"
```

```python
import sys
import struct
from contextlib import contextmanager
from asmlib import Asm, V, S

NAME = "adaLN_cond__sliding_local_dilated__dense_activation_silu__prompt"
STAMPS = "--stamps" in sys.argv
N_X1 = 4

HP = 928
WS_MODG = 0
WS_FLAGS = 16384
WS_STAMP = 14 << 20
WS_OX = 1 << 20
WS_X1 = 3 << 20
WS_ST = 5 << 20
WS_FX = 6 << 20
WS_SIZE = 16 << 20
L_HT = 0
L_Q = 0
L_K = 8192
L_V = 8192 + 10240
L_OT = 0
L_U = 74240
L_RING = 74240
L_MODV = 149504
L_MP = 160256
L_RED = 0
LDS_SIZE = 163840

sX, sWQKV, sWO, sW1, sW2, sC, sWMOD, sOUT, sWS, sDBG = [S(28 + 4 * i, 4) for i in range(10)]
s_cl, s_mem, s_wave, s_nonce = S(68), S(69), S(70), S(71)
st = [S(72 + i) for i in range(8)]
s_ringb, s_wam0 = S(80), S(81)
s_inc = [S(86), S(87), S(88)]
s_so = [S(82 + i) for i in range(4)]
s_m56 = S(90, 2)
s_mA = S(92, 2)
s_mB = S(94, 2)
s_mC = S(96, 2)
s_mD = S(98, 2)
s_R0 = S(100)
s_spin = S(101)
s_stat = [S(4 + i) for i in range(22)]


def f2u(x):
    return struct.unpack("<I", struct.pack("<f", x))[0]


a = Asm()
I = a.I

v_tid = V(0)
v_lane = V(1)
v_c = V(2)
v_g = V(3)
v_l16 = V(4)
v_frag = V(5)
v_a0, v_a3 = V(6), V(7)
v_src = V(8)
v_gp = V(9)
v_t = [V(10 + i) for i in range(10)]
v_trN = [V(134), V(135)]
v_trP = [V(132), V(133)]
P0 = 20


@contextmanager
def cond():
    stt = a.save()
    yield
    a.restore(stt)


stamp_idx = [0]


stamp_names = []


def stamp(name=""):
    if not STAMPS:
        return
    k = stamp_idx[0]
    stamp_idx[0] += 1
    stamp_names.append(name)
    with cond():
        I("s_memrealtime", S(26, 2))
        a.wait(lgkm=0)
        I("v_writelane_b32", V(0), S(26), k)


def stamp_at(k, name):
    if not STAMPS:
        return
    fixed_names[k] = name
    with cond():
        I("s_memrealtime", S(26, 2))
        a.wait(lgkm=0)
        I("v_writelane_b32", V(0), S(26), k)


fixed_names = {}


def stamp_flush():
    if not STAMPS:
        return
    I("s_lshl_b32", st[7], S(2), 3)
    I("s_add_u32", st[7], st[7], s_wave)
    I("s_lshl_b32", st[7], st[7], 8)
    I("s_add_u32", st[7], st[7], WS_STAMP)
    I("v_lshlrev_b32", v_t[9], 2, v_lane)
    I("buffer_store_dword", V(0), v_t[9], sWS, st[7], mods="offen")


def bf16r_pair(dlo, dhi, x, y, tmp):
    I("v_cvt_pk_bf16_f32", tmp, x, y)
    I("v_lshlrev_b32", dlo, 16, tmp)
    I("v_and_b32", dhi, 0xFFFF0000, tmp)


def unpack(dlo, dhi, src):
    I("v_lshlrev_b32", dlo, 16, src)
    I("v_and_b32", dhi, 0xFFFF0000, src)


def xrow_reduce(op, x, tmp):
    I("v_mov_b32", tmp, x)
    I("v_permlane32_swap_b32", x, tmp)
    I(op, x, x, tmp)
    I("v_mov_b32", tmp, x)
    I("v_permlane16_swap_b32", x, tmp)
    I(op, x, x, tmp)


def reduce4(q):
    I("v_permlane32_swap_b32", q[0], q[2])
    I("v_permlane32_swap_b32", q[1], q[3])
    I("v_add_f32", q[0], q[0], q[2])
    I("v_add_f32", q[1], q[1], q[3])
    I("v_permlane16_swap_b32", q[0], q[1])
    I("v_add_f32", q[0], q[0], q[1])
    for r in (8, 4, 2, 1):
        I("v_add_f32_dpp", q[0], q[0], q[0], mods=f"row_ror:{r} row_mask:0xf bank_mask:0xf")


def ln_scalars(s1, s2, t0, t1, t2):
    I("v_mul_f32", s1, f2u(1.0 / 448), s1)
    I("v_mul_f32", s2, f2u(1.0 / 448), s2)
    I("v_fma_f32", s2, -s1, s1, s2)
    I("v_max_f32", s2, 0, s2)
    bf16r_pair(t0, t1, s1, s2, t2)
    I("v_add_f32", t1, f2u(1e-5), t1)
    I("v_cvt_pk_bf16_f32", t2, t1, t1)
    I("v_lshlrev_b32", t1, 16, t2)
    I("v_sqrt_f32", t1, t1)
    I("v_cvt_pk_bf16_f32", t2, t1, t1)
    I("v_lshlrev_b32", t1, 16, t2)
    I("v_rcp_f32", s1, t1)
    I("v_mul_f32", s2, -t0, s1)


def pack8(dst, acc):
    for k in range(4):
        I("v_cvt_pk_bf16_f32", V(dst + k), V(acc + 2 * k), V(acc + 2 * k + 1))


def poll_flags(xi, nmem):
    lp, done = a.newlabel("poll"), a.newlabel("polld")
    I("s_lshl_b32", st[0], s_cl, 7)
    I("s_add_u32", st[0], st[0], WS_FLAGS + xi * 4096)
    I("v_min_u32", v_t[0], nmem - 1, v_lane)
    I("v_lshlrev_b32", v_t[0], 2, v_t[0])
    I("s_mov_b32", s_spin, 0)
    a.label(lp)
    I("buffer_load_dword", v_t[1], v_t[0], sWS, st[0], mods="offen sc1")
    I("s_add_u32", s_spin, s_spin, 1)
    I("s_cmp_gt_u32", s_spin, 400000)
    I("s_cbranch_scc1", done)
    a.wait(vm=0)
    I("v_cmp_ne_u32", "vcc", s_nonce, v_t[1])
    I("s_cbranch_vccnz", lp)
    a.label(done)
    a.wait(vm=0)


def set_flag(xi):
    I("s_lshl_b32", st[0], s_cl, 7)
    I("s_lshl_b32", st[1], s_mem, 2)
    I("s_add_u32", st[0], st[0], st[1])
    I("s_add_u32", st[0], st[0], WS_FLAGS + xi * 4096)
    I("v_mov_b32", v_t[0], 0)
    I("v_mov_b32", v_t[1], s_nonce)
    I("s_mov_b64", "exec", 1)
    I("buffer_store_dword", v_t[1], v_t[0], sWS, st[0], mods="offen sc1")
    I("s_mov_b64", "exec", -1)


def poll_modvec(vecs, G):
    lp, done = a.newlabel("mpoll"), a.newlabel("mpolld")
    n = len(vecs)
    I("s_mov_b64", "exec", s_m56)
    I("v_lshlrev_b32", v_t[0], 5, v_lane)
    I("s_mov_b32", s_spin, 0)
    a.label(lp)
    for k, vec in enumerate(vecs):
        I("s_mov_b32", st[0], WS_MODG + vec * 1792)
        I("buffer_load_dwordx4", V(G + 8 * k, 4), v_t[0], sWS, st[0], mods="offen sc1")
        I("buffer_load_dwordx4", V(G + 8 * k + 4, 4), v_t[0], sWS, st[0], mods="offen offset:16 sc1")
    I("s_add_u32", s_spin, s_spin, 1)
    I("s_cmp_gt_u32", s_spin, 400000)
    I("s_cbranch_scc1", done)
    a.wait(vm=0)
    first = True
    for k in range(n):
        for j in range(4):
            tag = V(G + 8 * k + 2 * j + 1)
            if first:
                I("v_xor_b32", v_t[1], s_nonce, tag)
                first = False
            else:
                I("v_xor_b32", v_t[2], s_nonce, tag)
                I("v_or_b32", v_t[1], v_t[1], v_t[2])
    I("v_cmp_ne_u32", "vcc", 0, v_t[1])
    I("s_cbranch_vccnz", lp)
    a.label(done)
    a.wait(vm=0)
    T = G + 8 * n
    for k, vec in enumerate(vecs):
        for j in range(4):
            unpack(V(T + 2 * j), V(T + 2 * j + 1), V(G + 8 * k + 2 * j))
        if vec in (1, 4):
            for j in range(8):
                I("v_add_f32", V(T + j), 1.0, V(T + j))
            for j in range(4):
                bf16r_pair(V(T + 2 * j), V(T + 2 * j + 1), V(T + 2 * j), V(T + 2 * j + 1), v_t[2])
        I("v_add_u32", v_t[3], L_MODV + vec * 1792, v_t[0])
        I("ds_write_b128", v_t[3], V(T, 4))
        I("ds_write_b128", v_t[3], V(T + 4, 4), mods="offset:16")
        a.wait(lgkm=0)
    I("s_mov_b64", "exec", -1)


def barrier():
    a.wait(lgkm=0)
    I("s_barrier")


def touch_chip(wave, mats, dst, vtmp):
    lab = a.newlabel("ntch")
    with cond():
        I("s_cmp_lg_u32", s_wave, wave)
        I("s_cbranch_scc1", lab)
        for srd, nlines in mats:
            per = (nlines + 255) // 256
            I("s_mul_i32", st[0], S(2), per * 128)
            for k0 in range(0, per, 64):
                I("v_min_u32", vtmp, min(per - k0, 64) - 1, v_lane)
                I("v_lshlrev_b32", vtmp, 7, vtmp)
                I("buffer_load_dword", dst, vtmp, srd, st[0], mods="offen")
                if k0 + 64 < per:
                    I("s_add_u32", st[0], st[0], 8192)
        a.label(lab)


class Mat:
    def __init__(self, idx, srd, pitch, perm, steps):
        self.idx, self.srd, self.pitch, self.perm, self.steps = idx, srd, pitch, perm, steps


MA = Mat(0, sWQKV, 2688, False, [32 * 2688] * 14)
MB = Mat(1, sWO, 896, True, [28 * 896] * 4)
MC = Mat(2, sW1, 3584, False, [32 * 3584] * 14)
MD = Mat(3, sW2, 896, True, [64, 32 * 896 - 64] * 7)


class Stream:
    def __init__(self):
        self.blocks = []
        self.issued = 0
        self.pulled = 0
        self.free = []
        self.inflight = {}
        self.cur_src = None

    def add(self, mat, dsts):
        for n, d in enumerate(dsts):
            self.blocks.append((mat, n, d))

    def state(self):
        return (self.issued, self.pulled, list(self.free), dict(self.inflight), self.cur_src)

    def set_state(self, s):
        self.issued, self.pulled, self.free, self.inflight, self.cur_src = s[0], s[1], list(s[2]), dict(s[3]), s[4]

    def _set_src(self, mat):
        key = (mat.pitch, mat.perm)
        if self.cur_src == key:
            return
        self.cur_src = key
        I("v_lshrrev_b32", v_src, 4 if not mat.perm else 3, v_lane)
        I("v_and_b32", v_src, 2, v_src)
        I("v_xor_b32", v_src, v_src, v_lane)
        I("v_and_b32", v_src, 3, v_src)
        I("v_lshlrev_b32", v_src, 4, v_src)
        I("v_lshrrev_b32", v_t[7], 2, v_lane)
        I("s_mov_b32", st[7], mat.pitch)
        I("v_mad_u32_u24", v_src, v_t[7], st[7], v_src)

    def can_issue(self):
        return self.issued < len(self.blocks) and self.free

    def issue(self, n=1):
        for _ in range(n):
            if not self.can_issue():
                return
            mat, k, d = self.blocks[self.issued]
            slot, lgtok = self.free.pop(0)
            a.wait_lg(lgtok)
            self._set_src(mat)
            base = s_ringb
            so = s_so[mat.idx]
            for j in range(2):
                I("s_add_u32", "m0", base, slot[1] * 2048 + j * 1024)
                if j == 0:
                    I("s_add_u32", st[7], so, 16 * mat.pitch)
                    tok = I("buffer_load_dwordx4", v_src, mat.srd, so, mods="offen lds")
                else:
                    I("s_add_u32", so, so, mat.steps[k])
                    tok = I("buffer_load_dwordx4", v_src, mat.srd, st[7], mods="offen lds")
            self.inflight[self.issued] = (slot, tok)
            self.issued += 1

    def pull(self, n=1, keep_temp=True):
        for _ in range(n):
            if self.pulled >= self.issued:
                return
            mat, k, d = self.blocks[self.pulled]
            slot, tok = self.inflight.pop(self.pulled)
            a.wait_vm(tok)
            a.lg_room(4)
            adr = v_trP if mat.perm else v_trN
            hstep = 1024 if mat.perm else 256
            off = slot[1] * 2048
            for t in range(2):
                for h in range(2):
                    lg = I("ds_read_b64_tr_b16", V(d + 4 * t + 2 * h, 2), adr[t], mods=f"offset:{off + h * hstep}")
            if slot[0] == "r" or keep_temp:
                self.free.append((slot, lg))
            self.last_lg = lg
            self.pulled += 1

    def drop_temp(self):
        self.free = [f for f in self.free if f[0][0] == "r"]


def T(base, j):
    return V(base + 4 * j, 4)


WA = [P0 + 8 * n for n in range(14)]
WB = [224 + 8 * n for n in range(4)]
WC = [P0 + 8 * n for n in range(14)]
WD = [192 + 8 * n for n in range(8)] + [P0 + 8 * n for n in range(6)]
v_trA = [[V(250), V(251)], [V(252), V(253)]]
v_srcA = V(254)
SM = Stream()
SM.add(MB, WB)
SM.add(MC, WC)
SM.add(MD, WD)
SM.free = [(("r", k), None) for k in range(4)]

a.raw(f"""; Kernarg layout for this problem (88 bytes, ptrs only, base s[0:1]):
; @launch grid=(256,1,1) block=(512,1,1) lds={LDS_SIZE}
.amdgcn_target "amdgcn-amd-amdhsa--gfx950"
.text
.globl {NAME}_kernel
.p2align 8
.type {NAME}_kernel,@function
{NAME}_kernel:""")

I("s_cmp_ge_u32", S(2), 256)
I("s_cbranch_scc1", "L_end")
I("s_load_dwordx16", S(4, 16), S(0, 2), 0)
I("s_load_dwordx4", S(20, 4), S(0, 2), 64)
I("s_load_dwordx2", S(24, 2), S(0, 2), 80)
I("v_and_b32", v_lane, 63, v_tid)
I("v_lshrrev_b32", v_t[0], 6, v_tid)
I("v_and_b32", v_c, 15, v_lane)
I("v_lshrrev_b32", v_g, 4, v_lane)
I("v_lshlrev_b32", v_l16, 4, v_lane)
I("v_readfirstlane_b32", s_wave, v_t[0])
I("v_mul_u32_u24", v_frag, HP, v_c)
I("v_lshl_add_u32", v_frag, v_g, 4, v_frag)
I("v_and_b32", v_t[0], 1, v_g)
I("v_lshrrev_b32", v_gp, 1, v_g)
I("v_lshl_add_u32", v_gp, v_t[0], 1, v_gp)
I("s_and_b32", st[0], S(2), 7)
I("s_lshr_b32", st[1], S(2), 3)
I("s_and_b32", s_mem, st[1], 7)
I("s_lshr_b32", st[1], st[1], 3)
I("s_lshl_b32", s_cl, st[0], 2)
I("s_add_u32", s_cl, s_cl, st[1])
I("s_lshl_b32", s_R0, s_cl, 6)
I("s_mov_b32", s_m56[0], -1)
I("s_mov_b32", s_m56[1], 0x00FFFFFF)
I("s_lshl_b32", s_ringb, s_wave, 13)
I("s_add_u32", s_ringb, s_ringb, L_RING)
I("v_bfe_u32", v_t[1], v_lane, 2, 2)
I("v_and_b32", v_t[2], 3, v_lane)
I("v_lshlrev_b32", v_t[1], 6, v_t[1])
I("v_lshl_add_u32", v_t[1], v_t[2], 3, v_t[1])
I("v_lshl_add_u32", v_t[1], v_t[0], 5, v_t[1])
I("v_lshl_add_u32", v_t[2], v_g, 9, v_t[1])
I("v_lshl_add_u32", v_t[3], v_g, 8, v_t[1])
I("v_add_u32", v_trN[0], s_ringb, v_t[2])
I("v_xor_b32", v_trN[1], 32, v_trN[0])
I("v_add_u32", v_trP[0], s_ringb, v_t[3])
I("v_xor_b32", v_trP[1], 32, v_trP[0])
I("s_and_b32", st[0], s_wave, 3)
I("s_lshr_b32", st[1], s_wave, 2)
I("s_mul_i32", s_so[0], st[0], 8 * 2688)
I("s_mul_i32", st[2], st[1], 896)
I("s_add_u32", s_so[0], s_so[0], st[2])
I("s_mul_i32", st[2], s_mem, 112)
I("s_add_u32", s_so[0], s_so[0], st[2])
I("s_lshl_b32", s_wam0, st[0], 10)
I("s_lshl_b32", st[2], st[1], 12)
I("s_add_u32", s_wam0, s_wam0, st[2])
I("s_mov_b32", s_inc[2], 85120)
I("s_cmp_eq_u32", st[1], 0)
I("s_cselect_b32", s_inc[0], 1792, s_inc[2])
I("s_cselect_b32", s_inc[1], s_inc[2], 1792)
I("s_and_b32", st[2], st[0], 1)
I("s_lshl_b32", st[2], st[2], 2)
I("v_lshrrev_b32", v_t[4], 3, v_lane)
I("v_and_b32", v_t[5], 2, v_t[4])
I("v_or_b32", v_t[5], st[2], v_t[5])
I("v_xor_b32", v_t[5], v_t[5], v_lane)
I("v_and_b32", v_t[5], 7, v_t[5])
I("v_mul_u32_u24", v_srcA, 2688, v_t[4])
I("v_lshl_add_u32", v_srcA, v_t[5], 4, v_srcA)
I("s_lshr_b32", st[0], s_wave, 1)
I("s_and_b32", st[0], st[0], 1)
I("s_mul_i32", st[0], st[0], 56)
I("s_and_b32", st[2], s_wave, 1)
I("s_add_u32", st[2], st[2], 1)
I("s_cmp_lt_u32", s_wave, 4)
I("s_cselect_b32", st[2], st[2], 0)
I("s_lshl_b32", st[2], st[2], 12)
I("v_bfe_u32", v_t[4], v_lane, 2, 2)
I("v_lshlrev_b32", v_t[5], 10, v_g)
I("v_lshl_add_u32", v_t[5], v_t[4], 7, v_t[5])
I("v_add_u32", v_t[5], st[2], v_t[5])
I("v_and_b32", v_t[4], 2, v_t[4])
I("v_lshl_or_b32", v_t[4], v_t[0], 2, v_t[4])
I("v_lshlrev_b32", v_t[4], 4, v_t[4])
I("v_and_b32", v_t[6], 3, v_lane)
I("v_lshlrev_b32", v_t[6], 3, v_t[6])
I("v_add_u32", v_t[6], st[0], v_t[6])
for t in range(2):
    if t:
        I("v_add_u32", v_t[6], 32, v_t[6])
    I("v_xor_b32", v_t[7], v_t[6], v_t[4])
    I("v_add_u32", v_trA[0][t], v_t[5], v_t[7])
    I("v_add_u32", v_trA[1][t], L_U, v_trA[0][t])
I("s_lshr_b32", st[0], s_wave, 1)
I("s_mul_i32", st[0], st[0], 4 * 28 * 896)
I("s_and_b32", st[1], s_wave, 1)
I("s_lshl_b32", st[1], st[1], 6)
I("s_add_u32", st[0], st[0], st[1])
I("s_lshl_b32", st[1], s_mem, 7)
I("s_add_u32", s_so[1], st[0], st[1])
I("s_lshl_b32", st[0], s_mem, 9)
I("s_lshl_b32", st[2], s_wave, 6)
I("s_add_u32", s_so[2], st[0], st[2])
I("s_mul_i32", st[0], s_wave, 224 * 896)
I("s_add_u32", s_so[3], st[0], st[1])
a.wait(lgkm=0)
for srd, p, size in ((sX, 4, 1835008), (sWQKV, 6, 1204224), (sWO, 8, 401408), (sW1, 12, 1605632), (sW2, 14, 1605632),
                     (sC, 16, 896), (sWMOD, 18, 2408448), (sOUT, 20, 1835008), (sWS, 24, WS_SIZE), (sDBG, 22, 256)):
    I("s_mov_b32", srd[0], S(p))
    I("s_and_b32", srd[1], S(p + 1), 0xFFFF)
    I("s_mov_b32", srd[2], size)
    I("s_mov_b32", srd[3], 0x00020000)
stamp("start")

with cond():
    I("s_cmp_lg_u32", s_wave, 7)
    I("s_cbranch_scc1", "L_nonce_pub")
    I("s_cmp_lg_u32", S(2), 0)
    I("s_cbranch_scc1", "L_nonce_pub")
    I("v_mov_b32", v_t[0], 0)
    I("s_memrealtime", S(26, 2))
    a.wait(lgkm=0)
    I("s_or_b32", s_nonce, S(26), 1)
    I("v_mov_b32", v_t[1], s_nonce)
    I("s_mov_b64", "exec", 1)
    I("buffer_store_dword", v_t[1], v_t[0], sDBG, 0, mods="offen sc1")
    I("s_mov_b64", "exec", -1)
    a.label("L_nonce_pub")

def mod_loads(slab_off, MW):
    I("v_lshrrev_b32", v_t[0], 3, v_lane)
    I("s_lshl_b32", st[0], s_wave, 6)
    I("v_add_u32", v_t[0], st[0], v_t[0])
    I("v_mul_u32_u24", v_t[0], 5376, v_t[0])
    I("v_and_b32", v_t[2], 7, v_lane)
    I("v_lshl_add_u32", v_t[0], v_t[2], 4, v_t[0])
    I("s_lshl_b32", st[0], s_cl, 7)
    if slab_off:
        I("s_add_u32", st[0], st[0], slab_off * 128)
    for i in range(8):
        I("buffer_load_dwordx4", V(MW + 4 * i, 4), v_t[0], sWMOD, st[0], mods="offen")
        if i < 7:
            I("s_add_u32", st[0], st[0], 8 * 5376)


def mod_cloads(MCc):
    I("v_lshrrev_b32", v_t[0], 3, v_lane)
    I("s_lshl_b32", st[0], s_wave, 6)
    I("v_add_u32", v_t[0], st[0], v_t[0])
    I("v_lshlrev_b32", v_t[1], 1, v_t[0])
    for i in range(8):
        I("buffer_load_ushort", V(MCc + i), v_t[1], sC, 0, mods=f"offen offset:{16 * i}")


def mod_silu(MCc):
    for i in range(8):
        I("v_lshlrev_b32", V(MCc + i), 16, V(MCc + i))
        I("v_mul_f32", v_t[i], f2u(-1.4426950408889634), V(MCc + i))
    for i in range(8):
        I("v_exp_f32", v_t[i], v_t[i])
    for i in range(8):
        I("v_add_f32", v_t[i], 1.0, v_t[i])
    for i in range(8):
        I("v_rcp_f32", v_t[i], v_t[i])
    for i in range(8):
        I("v_mul_f32", V(MCc + i), V(MCc + i), v_t[i])
    for i in range(4):
        bf16r_pair(V(MCc + 2 * i), V(MCc + 2 * i + 1), V(MCc + 2 * i), V(MCc + 2 * i + 1), v_t[i])


def mod_partial(MW, MCc, SA, lds_base):
    for i in range(8):
        for j in range(4):
            t = V(SA + 8 + 2 * (j % 2), 2)
            unpack(t[0], t[1], V(MW + 4 * i + j))
            cc = V(MCc + i - i % 2, 2)
            sel = "op_sel:[0,1,0] op_sel_hi:[1,1,1]" if i % 2 else "op_sel:[0,0,0] op_sel_hi:[1,0,1]"
            acc = V(SA + 2 * j, 2)
            if i == 0:
                I("v_pk_mul_f32", acc, t, cc, mods="op_sel:[0,0] op_sel_hi:[1,0]")
            else:
                I("v_pk_fma_f32", acc, t, cc, acc, mods=sel)
    for j in range(8):
        I("v_add_f32_dpp", V(SA + j), V(SA + j), V(SA + j), mods="row_ror:8 row_mask:0xf bank_mask:0xf")
    I("s_lshl_b32", st[0], s_wave, 10)
    I("s_add_u32", st[0], st[0], lds_base)
    I("v_lshlrev_b32", v_t[0], 8, v_g)
    I("v_lshl_add_u32", v_t[0], v_c, 5, v_t[0])
    I("v_add_u32", v_t[0], st[0], v_t[0])
    I("v_cmp_gt_u32", "vcc", 8, v_c)
    I("s_and_saveexec_b64", S(26, 2), "vcc")
    I("ds_write_b128", v_t[0], V(SA, 4))
    I("ds_write_b128", v_t[0], V(SA + 4, 4), mods="offset:16")
    I("s_mov_b64", "exec", -1)


def mod_publish(slab_off, SA, lds_base):
    I("v_lshrrev_b32", v_t[0], 5, v_lane)
    I("v_mul_u32_u24", v_t[0], 14 * 256, v_t[0])
    I("v_and_b32", v_t[1], 31, v_lane)
    I("v_lshl_add_u32", v_t[0], v_t[1], 3, v_t[0])
    I("v_add_u32", v_t[0], lds_base, v_t[0])
    for k in range(14):
        I("ds_read_b64", V(SA + 2 * k, 2), v_t[0], mods=f"offset:{256 * k}")
    a.wait(lgkm=0)
    for k in range(1, 7):
        I("v_pk_add_f32", V(SA, 2), V(SA, 2), V(SA + 2 * k, 2))
        I("v_pk_add_f32", V(SA + 14, 2), V(SA + 14, 2), V(SA + 14 + 2 * k, 2))
    I("v_pk_add_f32", V(SA, 2), V(SA, 2), V(SA + 14, 2))
    for r in range(2):
        I("v_mov_b32", v_t[2 + r], V(SA + r))
    for r in range(2):
        I("v_permlane32_swap_b32", V(SA + r), v_t[2 + r])
    for r in range(2):
        I("v_add_f32", V(SA + r), V(SA + r), v_t[2 + r])
    I("v_cvt_pk_bf16_f32", V(SA + 2), V(SA), V(SA + 1))
    I("v_mov_b32", V(SA + 3), s_nonce)
    I("v_lshlrev_b32", v_t[0], 3, v_lane)
    I("s_lshl_b32", st[0], s_cl, 8)
    if slab_off:
        I("s_add_u32", st[0], st[0], slab_off * 256)
    I("s_mov_b32", "exec_hi", 0)
    I("buffer_store_dwordx2", V(SA + 2, 2), v_t[0], sWS, st[0], mods=f"offen offset:{WS_MODG} sc1")
    I("s_mov_b64", "exec", -1)


I("s_cmp_eq_u32", s_mem, 7)
I("s_cselect_b32", st[6], s_cl, -1)
I("s_cmp_ge_u32", st[6], 21)
I("s_cselect_b32", st[6], -1, st[6])
s_prod = st[6]

MW = 20
MCc = 52
MSA = 60
L_MP1 = 0
with cond():
    I("s_cmp_eq_u32", s_prod, -1)
    I("s_cbranch_scc1", "L_nomodld")
    mod_cloads(MCc)
    mod_loads(0, MW)
    a.label("L_nomodld")
vm_after_mod = a.vm_n
touch_chip(0, [(sWQKV, 9408)], V(240), V(241))

XR = 176
UR = 136
I("v_cmp_gt_u32", "vcc", 56, v_lane)
I("v_mov_b32", v_t[0], 0x10000000)
I("v_cndmask_b32", v_a0, v_t[0], v_l16, "vcc")
I("s_mul_i32", st[0], s_wave, 10)
I("s_add_u32", st[0], st[0], s_R0)
I("s_sub_u32", st[0], st[0], 16)
for i in range(10):
    I("s_max_i32", st[1], st[0], 0)
    I("s_mul_i32", st[1], st[1], 896)
    tok_x = I("buffer_load_dwordx4", V(XR + 4 * i, 4), v_a0, sX, st[1], mods="offen")
    if i < 9:
        I("s_add_u32", st[0], st[0], 1)
stamp("x_issued")
I("s_barrier")
with cond():
    I("s_cmp_lg_u32", s_wave, 7)
    I("s_cbranch_scc1", "L_nonce_done")
    I("s_cmp_eq_u32", S(2), 0)
    I("s_cbranch_scc1", "L_nonce_done")
    I("v_mov_b32", v_t[0], 0)
    I("s_mov_b32", s_spin, 0)
    a.label("L_nonce_lp")
    I("buffer_load_dword", v_t[1], v_t[0], sDBG, 0, mods="offen sc1")
    I("s_add_u32", s_spin, s_spin, 1)
    I("s_cmp_gt_u32", s_spin, 400000)
    I("s_cbranch_scc1", "L_nonce_done")
    a.wait(vm=0)
    I("v_readfirstlane_b32", s_nonce, v_t[1])
    I("s_cmp_eq_u32", s_nonce, 0)
    I("s_cbranch_scc1", "L_nonce_lp")
    a.label("L_nonce_done")
a.fence()
stamp("nonce")

with cond():
    I("s_cmp_eq_u32", s_prod, -1)
    I("s_cbranch_scc1", "L_nomod")
    a.wait(vm=a.vm_n - vm_after_mod)
    mod_silu(MCc)
    mod_partial(MW, MCc, MSA, 0)
    barrier()
    I("s_cmp_lg_u32", s_wave, 7)
    I("s_cbranch_scc1", "L_mod_b2")
    mod_publish(0, MSA, 0)
    a.label("L_mod_b2")
    I("s_barrier")
    a.label("L_nomod")
a.fence()
stamp("mod_done")


wa_tok = []


def wa_issue(n=1):
    for _ in range(n):
        j = len(wa_tok)
        if j >= 21:
            return
        lin = 2 * j * 4096
        base = L_U + lin if j < 9 else (lin - 73728 if j < 18 else L_U + lin - 147456)
        I("s_add_u32", "m0", s_wam0, base)
        I("s_nop", 0)
        wa_tok.append(I("buffer_load_dwordx4", v_srcA, sWQKV, s_so[0], mods="offen lds"))
        I("s_add_u32", s_so[0], s_so[0], s_inc[j % 3])


def wa_pull(sk):
    reg = 1 if (sk < 6 or sk >= 12) else 0
    off = (sk % 6) * 12288
    a.lg_room(4)
    for t in range(2):
        for h in range(2):
            I("ds_read_b64_tr_b16", V(WA[sk] + 4 * t + 2 * h, 2), v_trA[reg][t], mods=f"offset:{off + h * 512}")


wa_issue(18)
stamp("WA_issued")
a.wait_vm(tok_x)
stamp("x_ready")

S1, S2 = 216, 228
I("s_mov_b32", st[3], 0x3F803F80)
for i in range(10):
    for j in range(4):
        x = V(XR + 4 * i + j)
        I("v_dot2_f32_bf16", V(S1 + i), x, st[3], 0 if j == 0 else V(S1 + i))
        I("v_dot2_f32_bf16", V(S2 + i), x, x, 0 if j == 0 else V(S2 + i))
for i in (10, 11):
    I("v_mov_b32", V(S1 + i), 0)
    I("v_mov_b32", V(S2 + i), 0)
for gq in range(3):
    reduce4([V(S1 + 4 * gq + r) for r in range(4)])
    reduce4([V(S2 + 4 * gq + r) for r in range(4)])
I("v_cmp_eq_u32", s_mA, 1, v_c)
I("v_cmp_eq_u32", s_mB, 2, v_c)
for B in (S1, S2):
    I("v_cndmask_b32", V(B), V(B), V(B + 4), s_mA)
    I("v_cndmask_b32", V(B), V(B), V(B + 8), s_mB)
ln_scalars(V(S1), V(S2), v_t[0], v_t[1], v_t[2])
for i in range(10):
    I("v_readlane_b32", s_stat[2 * i], V(S1), 16 * (i % 4) + i // 4)
    I("v_readlane_b32", s_stat[2 * i + 1], V(S2), 16 * (i % 4) + i // 4)
stamp("stats")
touch_chip(5, [(sWO, 3136), (sW1, 12544)], V(240), V(241))
touch_chip(4, [(sWMOD, 18816)], V(240), V(241))


def norm_row(i):
    I("v_mov_b32", v_t[4], s_stat[2 * i + 1])
    src = [V(XR + 4 * i + j) for j in range(4)]
    if UR + 8 * i + 8 > XR + 4 * i:
        for j in range(4):
            I("v_mov_b32", v_t[j], src[j])
        src = v_t[:4]
    for j in range(4):
        unpack(V(UR + 8 * i + 2 * j), V(UR + 8 * i + 2 * j + 1), src[j])
    for j in range(4):
        u = V(UR + 8 * i + 2 * j, 2)
        I("v_pk_fma_f32", u, u, S(4 + 2 * i, 2), V(14, 2), mods="op_sel_hi:[1,0,0]")


a.wait_vm(wa_tok[8])
I("s_barrier")
stamp("sync1")
for i in range(10):
    if i < 6:
        wa_pull(i)
    norm_row(i)
a.wait_vm(wa_tok[17])
barrier()
stamp("sync2")
wa_issue(3)
for sk in range(6, 12):
    wa_pull(sk)
stamp("WA_done")

with cond():
    I("s_cmp_lg_u32", s_wave, 7)
    I("s_cbranch_scc1", "L_nomp1")
    poll_modvec([0, 1, 2], 216)
    a.label("L_nomp1")
a.fence()
barrier()
stamp("B1")

GV, SV = 216, 224
I("s_mov_b64", "exec", s_m56)
I("v_lshlrev_b32", v_t[0], 5, v_lane)
I("v_add_u32", v_t[0], L_MODV, v_t[0])
I("ds_read_b128", V(SV, 4), v_t[0])
I("ds_read_b128", V(SV + 4, 4), v_t[0], mods="offset:16")
I("ds_read_b128", V(GV, 4), v_t[0], mods="offset:1792")
I("ds_read_b128", V(GV + 4, 4), v_t[0], mods="offset:1808")
I("s_mul_i32", st[0], s_wave, 10 * HP)
I("v_add_u32", v_t[1], st[0], v_l16)
a.wait(lgkm=0)
for i in range(10):
    for j in range(4):
        u = V(UR + 8 * i + 2 * j, 2)
        I("v_pk_fma_f32", u, u, V(GV + 2 * j, 2), V(SV + 2 * j, 2))
    pk = 232 + 4 * (i % 2)
    for j in range(4):
        I("v_cvt_pk_bf16_f32", V(pk + j), V(UR + 8 * i + 2 * j), V(UR + 8 * i + 2 * j + 1))
    I("ds_write_b128", v_t[1], V(pk, 4), mods=f"offset:{L_HT + i * HP}")
I("s_mov_b64", "exec", -1)
a.wait_vm(wa_tok[20])
barrier()
stamp("B2")
touch_chip(5, [(sW2, 12544)], V(222), V(223))

ACA = 136
FR_A = [176 + 4 * k for k in range(10)]
PKA = [176 + 4 * k for k in range(5)]


def gemm_A(tiles, swapped, stream):
    nt = len(tiles)
    toks = {}

    def reads(s):
        for k, t in enumerate(tiles):
            a.lg_room(1)
            toks[(s, k)] = I("ds_read_b128", V(FR_A[5 * (s % 2) + k], 4), v_frag, mods=f"offset:{L_HT + t * 16 * HP + s * 64}")

    reads(0)
    wa_pull(12)
    wa_pull(13)
    for s in range(14):
        if s < 13:
            reads(s + 1)
        for k in range(nt):
            a.wait_lg(toks[(s, k)])
            f = V(FR_A[5 * (s % 2) + k], 4)
            for j in range(2):
                acc = V(ACA + 8 * k + 4 * j, 4)
                c = 0 if s == 0 else acc
                if swapped:
                    I("v_mfma_f32_16x16x32_bf16", acc, f, T(WA[s], j), c)
                else:
                    I("v_mfma_f32_16x16x32_bf16", acc, T(WA[s], j), f, c)
        if s in (0, 3, 6, 9, 13) and "--fine" in sys.argv:
            stamp_at(40 + s, f"A_s{s}")
        if s == 1:
            I("s_barrier")
        if stream:
            if s in (8, 9, 10, 11):
                SM.pull(1)
            if s in (1, 2, 3, 4, 9, 10, 11, 12):
                SM.issue(1)


def phaseA_roles(stream, sfx):
    I("s_lshr_b32", st[0], s_wave, 1)
    I("s_and_b32", st[0], st[0], 1)
    I("s_cmp_ge_u32", s_wave, 4)
    I("s_cbranch_scc1", "L_A_q" + sfx)
    I("s_and_b32", st[1], s_wave, 1)
    I("s_cmp_eq_u32", st[1], 1)
    I("s_cbranch_scc1", "L_A_v" + sfx)
    st_a, st_s = a.save(), SM.state()
    for role, lbase in (("k", L_K), ("v", L_V)):
        if role == "v":
            a.label("L_A_v" + sfx)
            a.fence()
            a.restore(st_a); SM.set_state(st_s)
        gemm_A([0, 1, 2, 3, 4], role == "v", stream)
        for k in range(5):
            pack8(PKA[k], ACA + 8 * k)
        I("s_mul_i32", st[1], st[0], 5120)
        I("s_add_u32", st[1], st[1], lbase)
        I("v_add_u32", v_t[0], st[1], v_l16)
        barrier()
        for k in range(5):
            I("ds_write_b128", v_t[0], V(PKA[k], 4), mods=f"offset:{1024 * k}")
        I("s_branch", "L_A_done")
    a.label("L_A_q" + sfx)
    a.fence()
    a.restore(st_a); SM.set_state(st_s)
    I("s_and_b32", st[1], s_wave, 1)
    I("s_mul_i32", st[2], st[1], 32 * HP)
    I("v_add_u32", v_frag, st[2], v_frag)
    gemm_A([1, 2], False, stream)
    I("v_subrev_u32", v_frag, st[2], v_frag)
    I("s_lshl_b32", st[2], st[0], 12)
    I("s_lshl_b32", st[1], st[1], 11)
    I("s_add_u32", st[1], st[1], st[2])
    I("s_add_u32", st[1], st[1], L_Q)
    I("v_add_u32", v_t[0], st[1], v_l16)
    I("v_cmp_ne_u32", "vcc", 3, v_g)
    for k in range(2):
        pack8(PKA[k], ACA + 8 * k)
        I("v_cndmask_b32", V(PKA[k] + 2), 0, V(PKA[k] + 2), "vcc")
        I("v_cndmask_b32", V(PKA[k] + 3), 0, V(PKA[k] + 3), "vcc")
    barrier()
    for k in range(2):
        I("ds_write_b128", v_t[0], V(PKA[k], 4), mods=f"offset:{1024 * k}")


I("s_cmp_lg_u32", s_mem, 7)
I("s_cbranch_scc1", "L_A_worker")
with cond():
    st_s0 = SM.state()
    mod_loads(21, 216)
    phaseA_roles(False, "_s")
    I("s_branch", "L_A_done")
    SM.set_state(st_s0)
a.label("L_A_worker")
a.fence()
phaseA_roles(True, "")
a.label("L_A_done")
a.fence()
barrier()
SM.free = [(f[0], None) for f in SM.free]
stamp("B3")

AT = 136
vQ, vK0, vK1, vVT0, vVT1 = V(AT, 4), V(AT + 4, 4), V(AT + 8, 4), V(AT + 12, 4), V(AT + 16, 4)
vS0, vS1, vP, vO0, vO1 = V(AT + 20, 4), V(AT + 24, 4), V(AT + 28, 4), V(AT + 32, 4), V(AT + 36, 4)
vsel = [V(AT + 40 + e) for e in range(4)]
u0, u1, mx, tm = V(AT + 44), V(AT + 45), V(AT + 46), V(AT + 47)
I("s_lshr_b32", st[0], s_wave, 2)
I("s_and_b32", st[1], s_wave, 3)
I("s_lshl_b32", st[2], s_wave, 10)
I("s_add_u32", st[2], st[2], L_Q)
I("v_add_u32", v_t[0], st[2], v_l16)
I("ds_read_b128", vQ, v_t[0])
I("s_mul_i32", st[2], st[0], 5)
I("s_add_u32", st[2], st[2], st[1])
I("s_lshl_b32", st[2], st[2], 10)
I("s_add_u32", st[2], st[2], L_K)
I("v_add_u32", v_t[0], st[2], v_l16)
I("ds_read_b128", vK0, v_t[0])
tk = I("ds_read_b128", vK1, v_t[0], mods="offset:1024")
I("ds_read_b64", vVT0[0:2], v_t[0], mods=f"offset:{L_V - L_K}")
I("ds_read_b64", vVT0[2:4], v_t[0], mods=f"offset:{L_V - L_K + 1024}")
I("ds_read_b64", vVT1[0:2], v_t[0], mods=f"offset:{L_V - L_K + 8}")
tv = I("ds_read_b64", vVT1[2:4], v_t[0], mods=f"offset:{L_V - L_K + 1024 + 8}")
I("v_and_b32", v_t[1], 1, v_c)
I("v_cmp_eq_u32", s_mA, 1, v_t[1])
I("v_lshlrev_b32", v_t[2], 2, v_g)
I("v_sub_u32", v_t[2], v_c, v_t[2])
I("v_sub_u32", v_t[2], v_t[2], v_t[1])
I("v_cmp_le_i32", s_mB, 0, v_t[2])
I("v_cmp_le_i32", s_mC, 2, v_t[2])
I("v_mov_b32", v_t[3], 0x0C0C0100)
I("v_mov_b32", v_t[4], 0x01000C0C)
I("v_cndmask_b32", v_t[3], v_t[3], v_t[4], s_mA)
I("v_mov_b32", v_t[4], 0x0C0C0302)
I("v_mov_b32", v_t[5], 0x03020C0C)
I("v_cndmask_b32", v_t[4], v_t[4], v_t[5], s_mA)
I("v_mov_b32", v_t[5], 0x0C0C0C0C)
I("v_cndmask_b32", vsel[0], v_t[3], v_t[5], s_mB)
I("v_cndmask_b32", vsel[1], v_t[4], v_t[5], s_mC)
I("v_cndmask_b32", vsel[2], v_t[5], v_t[3], s_mB)
I("v_cndmask_b32", vsel[3], v_t[5], v_t[4], s_mC)
I("s_or_b32", st[2], s_cl, st[1])
I("s_cmp_eq_u32", st[2], 0)
I("s_cselect_b64", S(26, 2), 0, -1)
I("s_or_b64", s_mD, s_mB, S(26, 2))
I("s_or_b64", S(26, 2), s_mC, S(26, 2))
a.wait_lg(tk)
I("v_mfma_f32_16x16x32_bf16", vS0, vK0, vQ, 0)
I("v_mfma_f32_16x16x32_bf16", vS1, vK1, vQ, 0)
I("v_cndmask_b32", vS0[0], vS0[0], vS0[1], s_mA)
I("v_cndmask_b32", vS0[2], vS0[2], vS0[3], s_mA)
I("v_cndmask_b32", vS1[0], vS1[0], vS1[1], s_mA)
I("v_cndmask_b32", vS1[2], vS1[2], vS1[3], s_mA)
I("v_cndmask_b32", u0, vS0[0], vS1[0], s_mB)
I("v_cndmask_b32", u1, vS0[2], vS1[2], s_mC)
bf16r_pair(u0, u1, u0, u1, tm)
I("v_mul_f32", u0, f2u(28 ** -0.5), u0)
I("v_mul_f32", u1, f2u(28 ** -0.5), u1)
bf16r_pair(u0, u1, u0, u1, tm)
I("v_mov_b32", tm, f2u(-1e9))
I("v_cndmask_b32", u0, tm, u0, s_mD)
I("v_cndmask_b32", u1, tm, u1, S(26, 2))
I("v_max_f32", mx, u0, u1)
xrow_reduce("v_max_f32", mx, tm)
I("v_sub_f32", u0, u0, mx)
I("v_sub_f32", u1, u1, mx)
I("v_mul_f32", u0, f2u(1.4426950408889634), u0)
I("v_mul_f32", u1, f2u(1.4426950408889634), u1)
I("v_exp_f32", u0, u0)
I("v_exp_f32", u1, u1)
I("v_add_f32", mx, u0, u1)
xrow_reduce("v_add_f32", mx, tm)
I("v_rcp_f32", mx, mx)
I("v_mul_f32", u0, u0, mx)
I("v_mul_f32", u1, u1, mx)
I("v_cvt_pk_bf16_f32", tm, u0, u1)
for e in range(4):
    I("v_perm_b32", vP[e], tm, tm, vsel[e])
a.wait_lg(tv)
I("v_mfma_f32_16x16x32_bf16", vO0, vVT0, vP, 0)
I("v_mfma_f32_16x16x32_bf16", vO1, vVT1, vP, 0)
I("v_cmp_ne_u32", "vcc", 3, v_g)
I("s_lshl_b32", st[2], st[1], 4)
I("s_lshl_b32", st[3], s_mem, 1)
I("s_add_u32", st[2], st[2], st[3])
I("s_add_u32", st[2], st[2], st[0])
I("s_lshl_b32", st[2], st[2], 10)
I("s_lshl_b32", st[3], s_cl, 16)
I("s_add_u32", st[2], st[2], st[3])
I("s_add_u32", st[2], st[2], WS_OX)
pack8(AT + 20, AT + 32)
I("v_cndmask_b32", vS0[2], 0, vS0[2], "vcc")
I("v_cndmask_b32", vS0[3], 0, vS0[3], "vcc")
tok_st = I("buffer_store_dwordx4", vS0, v_l16, sWS, st[2], mods="offen sc1")
XB = V(188, 4)
I("s_lshr_b32", st[0], s_wave, 1)
I("s_lshl_b32", st[0], st[0], 4)
I("s_add_u32", st[0], st[0], s_R0)
I("s_mul_i32", st[0], st[0], 896)
I("s_and_b32", st[1], s_wave, 1)
I("s_lshl_b32", st[1], st[1], 6)
I("s_add_u32", st[0], st[0], st[1])
I("s_lshl_b32", st[1], s_mem, 7)
I("s_add_u32", st[5], st[0], st[1])
I("v_mul_u32_u24", v_a3, 896, v_c)
I("v_lshl_add_u32", v_a3, v_gp, 4, v_a3)
tok_xb = I("buffer_load_dwordx4", XB, v_a3, sX, st[5], mods="offen")
I("s_cmp_eq_u32", s_mem, 7)
I("s_cbranch_scc1", "L_service")
for _ in range(2):
    SM.pull(1)
    SM.issue(1)
a.wait_vm(tok_st)
stamp("o_drained")
barrier()
with cond():
    I("s_cmp_lg_u32", s_wave, 7)
    I("s_cbranch_scc1", "L_nf1")
    set_flag(0)
    a.label("L_nf1")
for _ in range(N_X1):
    SM.pull(1)
    SM.issue(1)
with cond():
    I("s_cmp_lg_u32", s_wave, 7)
    I("s_cbranch_scc1", "L_w7_skip1")
    poll_flags(0, 8)
    a.label("L_w7_skip1")
a.fence()
stamp("pre_B5")
barrier()
stamp("B5")

OR_ = 136
I("s_lshl_b32", st[0], s_cl, 16)
I("s_lshl_b32", st[1], s_wave, 13)
I("s_add_u32", st[0], st[0], st[1])
I("s_add_u32", st[0], st[0], WS_OX)
tko = []
for k in range(8):
    tko.append(I("buffer_load_dwordx4", V(OR_ + 4 * k, 4), v_l16, sWS, st[0], mods=f"offen offset:{(k % 4) * 1024} sc1"))
    if k == 3:
        I("s_add_u32", st[0], st[0], 4096)
I("v_add_u32", v_t[0], st[1], v_l16)
SM.pull(4)
for k in range(8):
    a.wait_vm(tko[k])
    a.lg_room(1)
    I("ds_write_b128", v_t[0], V(OR_ + 4 * k, 4), mods=f"offset:{L_OT + k * 1024}")
barrier()
stamp("B6")
SM.issue(4)
ACB = 136
FRB = 168
I("s_lshr_b32", st[0], s_wave, 1)
I("s_lshl_b32", st[0], st[0], 12)
I("v_add_u32", v_t[0], st[0], v_l16)
tb = {}


def readB(s, m):
    tb[(s, m)] = I("ds_read_b128", V(FRB + 4 * m, 4), v_t[0], mods=f"offset:{L_OT + m * 16384 + s * 1024}")


for m in range(4):
    readB(0, m)
for s in range(4):
    for m in range(4):
        a.wait_lg(tb[(s, m)])
        for j in range(2):
            acc = V(ACB + 8 * m + 4 * j, 4)
            I("v_mfma_f32_16x16x32_bf16", acc, T(WB[s], j), V(FRB + 4 * m, 4), 0 if s == 0 else acc)
        if s < 3:
            readB(s + 1, m)
stamp("B_mfma")
barrier()
stamp("B6.5")
I("s_lshr_b32", st[0], s_wave, 1)
I("s_lshl_b32", st[0], st[0], 11)
I("s_and_b32", st[1], s_wave, 1)
I("s_lshl_b32", st[1], st[1], 13)
I("s_add_u32", st[0], st[0], st[1])
I("v_add_u32", v_t[0], st[0], v_l16)
for m in range(4):
    I("ds_write_b128", v_t[0], V(ACB + 8 * m, 4), mods=f"offset:{m * 16384}")
    I("ds_write_b128", v_t[0], V(ACB + 8 * m + 4, 4), mods=f"offset:{m * 16384 + 1024}")
barrier()
stamp("B7")
I("s_lshl_b32", st[0], s_wave, 13)
I("v_add_u32", v_t[1], st[0], v_l16)
for q in range(4):
    I("ds_read_b128", V(ACB + 8 * q, 4), v_t[1], mods=f"offset:{q * 2048}")
    I("ds_read_b128", V(ACB + 8 * q + 4, 4), v_t[1], mods=f"offset:{q * 2048 + 1024}")
GA = 168
I("s_and_b32", st[0], s_wave, 1)
I("s_lshl_b32", st[0], st[0], 7)
I("s_lshl_b32", st[1], s_mem, 8)
I("s_add_u32", st[0], st[0], st[1])
I("s_add_u32", st[4], st[0], L_MODV)
I("v_lshlrev_b32", v_t[2], 5, v_gp)
I("v_add_u32", v_t[2], st[4], v_t[2])
I("ds_read_b128", V(GA, 4), v_t[2], mods=f"offset:{2 * 1792}")
I("ds_read_b128", V(GA + 4, 4), v_t[2], mods=f"offset:{2 * 1792 + 16}")
a.wait(lgkm=0)
for r in range(8):
    I("v_add_f32", V(ACB + r), V(ACB + r), V(ACB + 8 + r))
    I("v_add_f32", V(ACB + 16 + r), V(ACB + 16 + r), V(ACB + 24 + r))
for r in range(8):
    I("v_add_f32", V(ACB + r), V(ACB + r), V(ACB + 16 + r))
for r in range(4):
    I("v_permlane16_swap_b32", V(ACB + r), V(ACB + 4 + r))
X1 = V(184, 4)


def epilogue(acc, gvec, xin, dst, E, XF):
    for r in range(4):
        bf16r_pair(V(E + 2 * r), V(E + 2 * r + 1), V(acc + 2 * r), V(acc + 2 * r + 1), v_t[3])
    for k in range(8):
        I("v_mul_f32", V(E + k), V(E + k), V(gvec + k))
    for r in range(4):
        bf16r_pair(V(E + 2 * r), V(E + 2 * r + 1), V(E + 2 * r), V(E + 2 * r + 1), v_t[3])
        unpack(V(XF + 2 * r), V(XF + 2 * r + 1), xin[r])
    for k in range(8):
        I("v_add_f32", V(E + k), V(E + k), V(XF + k))
    for r in range(4):
        I("v_cvt_pk_bf16_f32", dst[r], V(E + 2 * r), V(E + 2 * r + 1))


a.wait_vm(tok_xb)
epilogue(ACB, GA, XB, X1, 146, 154)
I("s_mov_b32", st[0], 0x3F803F80)
SS = V(162, 2)
for r in range(4):
    I("v_dot2_f32_bf16", SS[0], X1[r], st[0], 0 if r == 0 else SS[0])
    I("v_dot2_f32_bf16", SS[1], X1[r], X1[r], 0 if r == 0 else SS[1])
I("s_lshr_b32", st[0], s_wave, 1)
I("s_mul_i32", st[0], st[0], 16 * 896)
I("s_and_b32", st[1], s_wave, 1)
I("s_lshl_b32", st[2], st[1], 6)
I("s_add_u32", st[0], st[0], st[2])
I("s_lshl_b32", st[2], s_mem, 7)
I("s_add_u32", st[0], st[0], st[2])
I("s_lshl_b32", st[2], s_cl, 16)
I("s_add_u32", st[0], st[0], st[2])
I("s_add_u32", st[0], st[0], WS_X1)
I("buffer_store_dwordx4", X1, v_a3, sWS, st[0], mods="offen sc1")
xrow_reduce("v_add_f32", SS[0], v_t[3])
xrow_reduce("v_add_f32", SS[1], v_t[4])
I("s_lshl_b32", st[0], s_mem, 1)
I("s_add_u32", st[0], st[0], st[1])
I("s_lshl_b32", st[0], st[0], 9)
I("s_lshr_b32", st[1], s_wave, 1)
I("s_lshl_b32", st[1], st[1], 7)
I("s_add_u32", st[0], st[0], st[1])
I("s_lshl_b32", st[1], s_cl, 13)
I("s_add_u32", st[0], st[0], st[1])
I("s_add_u32", st[0], st[0], WS_ST)
I("v_lshlrev_b32", v_t[0], 3, v_lane)
I("s_mov_b64", "exec", 0xFFFF)
tok_st = I("buffer_store_dwordx2", SS, v_t[0], sWS, st[0], mods="offen sc1")
I("s_mov_b64", "exec", -1)
stamp("x1_stored")
SM.pull(2)
SM.issue(2)
a.wait_vm(tok_st)
stamp("x1_drained")
barrier()
with cond():
    I("s_cmp_lg_u32", s_wave, 7)
    I("s_cbranch_scc1", "L_nf2")
    set_flag(1)
    poll_modvec([3, 4, 5], 136)
    a.label("L_nf2")
a.fence()
for _ in range(4):
    SM.pull(1)
    SM.issue(1)
print("after X2 window: issued", SM.issued, "pulled", SM.pulled)
with cond():
    I("s_cmp_lg_u32", s_wave, 7)
    I("s_cbranch_scc1", "L_w7_skip2")
    poll_flags(1, 7)
    a.label("L_w7_skip2")
a.fence()
stamp("pre_B9")
barrier()
stamp("B9")

X1R = 136
STV = V(188, 4)
I("s_lshl_b32", st[0], s_cl, 13)
I("s_lshl_b32", st[1], s_wave, 6)
I("s_add_u32", st[0], st[0], st[1])
I("s_add_u32", st[0], st[0], WS_ST)
I("v_lshrrev_b32", v_t[0], 2, v_lane)
I("v_lshlrev_b32", v_t[0], 9, v_t[0])
I("v_and_b32", v_t[1], 3, v_lane)
I("v_lshl_add_u32", v_t[0], v_t[1], 4, v_t[0])
I("v_cmp_gt_u32", "vcc", 56, v_lane)
I("v_mov_b32", v_t[1], 0x10000000)
I("v_cndmask_b32", v_t[0], v_t[1], v_t[0], "vcc")
tok_stv = I("buffer_load_dwordx4", STV, v_t[0], sWS, st[0], mods="offen sc1")
I("s_lshl_b32", st[0], s_cl, 16)
I("s_mul_i32", st[1], s_wave, 8 * 896)
I("s_add_u32", st[0], st[0], st[1])
I("s_add_u32", st[0], st[0], WS_X1)
tkx = []
for i in range(8):
    tkx.append(I("buffer_load_dwordx4", V(X1R + 4 * i, 4), v_a0, sWS, st[0], mods=f"offen offset:{(i % 4) * 896} sc1"))
    if i == 3:
        I("s_add_u32", st[0], st[0], 4 * 896)
G2, SB = 168, 176
I("v_lshlrev_b32", v_t[0], 5, v_lane)
I("v_min_u32", v_t[0], 55 * 32, v_t[0])
I("v_add_u32", v_t[0], L_MODV, v_t[0])
I("ds_read_b128", V(SB, 4), v_t[0], mods=f"offset:{3 * 1792}")
I("ds_read_b128", V(SB + 4, 4), v_t[0], mods=f"offset:{3 * 1792 + 16}")
I("ds_read_b128", V(G2, 4), v_t[0], mods=f"offset:{4 * 1792}")
I("ds_read_b128", V(G2 + 4, 4), v_t[0], mods=f"offset:{4 * 1792 + 16}")
a.wait_vm(tok_stv)
for k in range(4):
    for r in (4, 8):
        I("v_add_f32_dpp", STV[k], STV[k], STV[k], mods=f"row_ror:{r} row_mask:0xf bank_mask:0xf")
for k in range(4):
    xrow_reduce("v_add_f32", STV[k], v_t[k])
ln_scalars(STV[0], STV[1], v_t[0], v_t[1], v_t[2])
ln_scalars(STV[2], STV[3], v_t[3], v_t[4], v_t[5])
for i in range(8):
    I("v_readlane_b32", s_stat[2 * i], STV[2 * (i % 2)], i // 2)
    I("v_readlane_b32", s_stat[2 * i + 1], STV[2 * (i % 2) + 1], i // 2)
I("s_mul_i32", st[0], s_wave, 8 * HP)
I("v_add_u32", v_t[1], st[0], v_l16)
a.wait(lgkm=0)
I("s_mov_b64", "exec", s_m56)
for i in range(8):
    a.wait_vm(tkx[i])
    I("v_mov_b32", V(188), s_stat[2 * i + 1])
    for j in range(4):
        unpack(v_t[2 + 2 * j], v_t[3 + 2 * j], V(X1R + 4 * i + j))
    for j in range(4):
        t = V(12 + 2 * j, 2)
        I("v_pk_fma_f32", t, t, S(4 + 2 * i, 2), V(188, 2), mods="op_sel_hi:[1,0,0]")
    for j in range(4):
        t = V(12 + 2 * j, 2)
        I("v_pk_fma_f32", t, t, V(G2 + 2 * j, 2), V(SB + 2 * j, 2))
    for j in range(4):
        I("v_cvt_pk_bf16_f32", V(X1R + 4 * i + j), v_t[2 + 2 * j], v_t[3 + 2 * j])
    I("ds_write_b128", v_t[1], V(X1R + 4 * i, 4), mods=f"offset:{L_HT + i * HP}")
I("s_mov_b64", "exec", -1)
barrier()
stamp("B10")
ACC_ = 136
FRC = 168
tc = {}
NWD0 = 4 + 14


def readC(s, m):
    a.lg_room(1)
    tc[(s, m)] = I("ds_read_b128", V(FRC + 4 * (2 * (s % 2) + m % 2), 4), v_frag, mods=f"offset:{L_HT + m * 16 * HP + s * 64}")


def silu_ops(m, PK):
    ops = []
    for k in range(8):
        x, t = V(ACC_ + 8 * m + k), v_t[k]
        ops.append(lambda x=x, t=t: I("v_mul_f32", t, f2u(-1.4426950408889634), x))
        ops.append(lambda t=t: I("v_exp_f32", t, t))
    for k in range(8):
        t = v_t[k]
        ops.append(lambda t=t: I("v_add_f32", t, 1.0, t))
        ops.append(lambda t=t: I("v_rcp_f32", t, t))
    for k in range(8):
        x, t = V(ACC_ + 8 * m + k), v_t[k]
        ops.append(lambda x=x, t=t: I("v_mul_f32", x, x, t))
    for k in range(4):
        ops.append(lambda k=k: I("v_cvt_pk_bf16_f32", V(PK + k), V(ACC_ + 8 * m + 2 * k), V(ACC_ + 8 * m + 2 * k + 1)))
    return ops


I("s_lshl_b32", st[3], s_mem, 3)
I("s_add_u32", st[3], st[3], s_wave)
I("s_lshl_b32", st[3], st[3], 10)
I("s_lshl_b32", st[1], s_cl, 18)
I("s_add_u32", st[3], st[3], st[1])
I("s_add_u32", st[3], st[3], WS_FX)
ftok = {}


def fstore(m, PK):
    ftok[m] = I("buffer_store_dwordx4", V(PK, 4), v_l16, sWS, st[3], mods="offen sc1")
    I("s_add_u32", st[3], st[3], 56 * 1024)


for half in range(2):
    ms = (2 * half, 2 * half + 1)
    bg = []
    if half == 1:
        bg = silu_ops(0, ACC_) + [lambda: fstore(0, ACC_)] + silu_ops(1, ACC_ + 8) + [lambda: fstore(1, ACC_ + 8)]
    for m in ms:
        readC(0, m)
    for s in range(14):
        if s < 13:
            for m in ms:
                readC(s + 1, m)
        for m in ms:
            a.wait_lg(tc[(s, m)])
            for j in range(2):
                acc = V(ACC_ + 8 * m + 4 * j, 4)
                I("v_mfma_f32_16x16x32_bf16", acc, T(WC[s], j), V(FRC + 4 * (2 * (s % 2) + m % 2), 4), 0 if s == 0 else acc)
                for _ in range(3):
                    if bg:
                        bg.pop(0)()
        nxt = SM.pulled - NWD0
        if half == 0 and s % 3 == 0 and nxt < 8:
            SM.pull(1)
            SM.issue(1)
        if half == 1 and s >= 8 and (nxt < 8 or nxt - 8 <= s):
            SM.pull(1)
            SM.issue(1)
        if half == 1 and s == 12:
            assert not bg
            a.wait_vm(ftok[1])
            I("s_barrier")
            with cond():
                I("s_cmp_lg_u32", s_wave, 7)
                I("s_cbranch_scc1", "L_nf3a")
                set_flag(2)
                a.label("L_nf3a")
print("after GEMM C: issued", SM.issued, "pulled", SM.pulled)
stamp("C_mfma")
for m in (2, 3):
    for op in silu_ops(m, ACC_ + 8 * m):
        op()
    fstore(m, ACC_ + 8 * m)
stamp("f_stored")
while SM.pulled < len(SM.blocks):
    SM.pull(1)
    SM.issue(1)
GBr = 124
I("v_lshlrev_b32", v_t[2], 5, v_gp)
I("v_add_u32", v_t[2], st[4], v_t[2])
I("ds_read_b128", V(GBr, 4), v_t[2], mods=f"offset:{5 * 1792}")
I("ds_read_b128", V(GBr + 4, 4), v_t[2], mods=f"offset:{5 * 1792 + 16}")
a.wait_vm(ftok[3])
with cond():
    I("s_cmp_lg_u32", s_wave, 7)
    I("s_cbranch_scc1", "L_nf3p")
    poll_flags(2, 7)
    a.label("L_nf3p")
a.fence()
stamp("f_drained")
barrier()
stamp("B11b")

FS = [68, 96, 136]
ACD = 164
I("s_mul_i32", st[3], s_wave, 7 * 1024)
I("s_lshl_b32", st[1], s_cl, 18)
I("s_add_u32", st[3], st[3], st[1])
I("s_add_u32", st[3], st[3], WS_FX)
tf = {}


def loadF(m):
    for s in range(7):
        tf[(m, s)] = I("buffer_load_dwordx4", V(FS[m % 3] + 4 * s, 4), v_l16, sWS, st[3], mods=f"offen offset:{(s % 4) * 1024} sc1")
        if s == 3:
            I("s_add_u32", st[3], st[3], 4096)
    I("s_add_u32", st[3], st[3], 56 * 1024 - 4096)


with cond():
    I("s_cmp_lg_u32", s_wave, 7)
    I("s_cbranch_scc1", "L_nf3b")
    set_flag(3)
    a.label("L_nf3b")
loadF(0)
loadF(1)
I("s_lshl_b32", st[2], s_wave, 11)
I("v_add_u32", v_t[4], st[2], v_l16)
I("v_add_u32", v_t[5], 65536, v_t[4])


def gemmD(m):
    for s in range(7):
        a.wait_vm(tf[(m, s)])
        for hf in range(2):
            for j in range(2):
                acc = V(ACD + 8 * hf + 4 * j, 4)
                I("v_mfma_f32_16x16x32_bf16", acc, T(WD[2 * s + hf], j), V(FS[m % 3] + 4 * s, 4), 0 if s == 0 else acc)
    for hf in range(2):
        owner = 2 * m + hf
        base = v_t[4] if owner < 4 else v_t[5]
        off = (owner % 4) * 16384
        I("ds_write_b128", base, V(ACD + 8 * hf, 4), mods=f"offset:{off}")
        I("ds_write_b128", base, V(ACD + 8 * hf + 4, 4), mods=f"offset:{off + 1024}")
    a.wait(lgkm=0)


gemmD(0)
with cond():
    I("s_cmp_lg_u32", s_wave, 7)
    I("s_cbranch_scc1", "L_nf3q")
    poll_flags(3, 7)
    a.label("L_nf3q")
a.fence()
I("s_barrier")
stamp("B12")
loadF(2)
loadF(3)
gemmD(1)
gemmD(2)
gemmD(3)
barrier()
stamp("B13")
I("s_lshl_b32", st[1], s_wave, 14)
I("v_add_u32", v_t[0], st[1], v_l16)
RR = 20
for src in range(8):
    a.lg_room(2)
    I("ds_read_b128", V(RR + 8 * src, 4), v_t[0], mods=f"offset:{src * 2048}")
    I("ds_read_b128", V(RR + 8 * src + 4, 4), v_t[0], mods=f"offset:{src * 2048 + 1024}")
a.wait(lgkm=0)
for half in range(2):
    for src in range(1, 4):
        for r in range(4):
            d = V(RR + 32 * half + 2 * r, 2)
            I("v_pk_add_f32", d, d, V(RR + 32 * half + 8 * src + 2 * r, 2))
for r in range(4):
    I("v_pk_add_f32", V(RR + 2 * r, 2), V(RR + 2 * r, 2), V(RR + 32 + 2 * r, 2))
for r in range(4):
    I("v_permlane16_swap_b32", V(RR + r), V(RR + 4 + r))
epilogue(RR, GBr, X1, V(100, 4), 104, 112)
I("buffer_store_dwordx4", V(100, 4), v_a3, sOUT, st[5], mods="offen")
stamp("end")
I("s_branch", "L_exit7")

a.label("L_service")
a.fence()
mod_cloads(248)
a.wait(vm=8)
barrier()
I("s_cmp_lg_u32", s_wave, 7)
I("s_cbranch_scc1", "L_snf1")
set_flag(0)
a.label("L_snf1")
I("s_cmp_eq_u32", s_prod, -1)
I("s_cbranch_scc1", "L_exit7")
stamp("srv_start")
a.wait(vm=0)
mod_silu(248)
mod_partial(216, 248, 136, 0)
barrier()
stamp("srv_bar")
I("s_cmp_lg_u32", s_wave, 7)
I("s_cbranch_scc1", "L_exit7")
mod_publish(21, 136, 0)
stamp("srv_pub")
a.label("L_exit7")
stamp_flush()
a.wait(vm=0)
a.label("L_end")
I("s_endpgm")

a.raw(f""".section .rodata,"a"
.p2align 6
.amdhsa_kernel {NAME}_kernel
  .amdhsa_next_free_vgpr 256
  .amdhsa_next_free_sgpr 102
  .amdhsa_accum_offset 256
  .amdhsa_group_segment_fixed_size 0
  .amdhsa_kernarg_size 88
  .amdhsa_user_sgpr_count 2
  .amdhsa_user_sgpr_kernarg_segment_ptr 1
  .amdhsa_system_sgpr_workgroup_id_x 1
  .amdhsa_float_denorm_mode_32 3
  .amdhsa_float_denorm_mode_16_64 3
.end_amdhsa_kernel""")

out = sys.argv[1] if len(sys.argv) > 1 and not sys.argv[1].startswith("--") else f"cdna_kernels/{NAME}.s"
open(out, "w").write(a.text())
if STAMPS:
    nm = list(stamp_names) + ["-"] * (64 - len(stamp_names))
    for k, v in fixed_names.items():
        nm[k] = v
    while nm[-1] == "-":
        nm.pop()
    open(out + ".names", "w").write("\n".join(nm))
print(f"wrote {out}: {a.ninstr} instructions, {a.nops} nop pads, {stamp_idx[0]} stamps")
```
